```python
import torch

def _softmax(x, axis=-1):
    return torch.softmax(x, dim=axis)
def _gelu(x):
    return torch.nn.functional.gelu(x, approximate="tanh")
def _silu(x):
    return torch.nn.functional.silu(x)
def _sigmoid(x):
    return torch.sigmoid(x)
def _layernorm(x, axis=-1, eps=1e-5):
    m = x.mean(dim=axis, keepdim=True)
    v = x.var(dim=axis, keepdim=True, unbiased=False)
    return (x - m) / torch.sqrt(v + eps)
def _scatter_add(tgt, idx, src, axis=0):
    return tgt.clone().index_add_(axis, idx, src)
def _segment_sum(src, seg, n):
    out = torch.zeros((n,) + src.shape[1:], dtype=src.dtype)
    return out.index_add_(0, seg, src)
def _pad(x, pw):
    flat = tuple(v for pair in reversed(pw) for v in pair)
    return torch.nn.functional.pad(x, flat)

kernel_name = 'sequential_preLN__grouped_kv_mqa__mixer_token_mlp__prompt'

def setup_inputs():

    _w = (lambda a: (lambda t: t.to(torch.bfloat16) if t.is_floating_point() else t)(torch.as_tensor(a)))
    def _A_setup():
        B, S, D, H = 1, 2048, 448, 16
        Dh = D // H
        return {
            "x": _w((lambda *s: torch.randn(*s, dtype=torch.bfloat16) * 0.05)(B, S, D)),
            "wq": _w((lambda *s: torch.randn(*s, dtype=torch.bfloat16) * 0.05)(D, H * Dh)),
            "wk": _w((lambda *s: torch.randn(*s, dtype=torch.bfloat16) * 0.05)(D, Dh)),
            "wv": _w((lambda *s: torch.randn(*s, dtype=torch.bfloat16) * 0.05)(D, Dh)),
            "wo": _w((lambda *s: torch.randn(*s, dtype=torch.bfloat16) * 0.05)(H * Dh, D)),
        }
    _A_in = _A_setup()

    def _B_setup():
        B, S, D, F = 1, 2048, 448, 1792
        return {
            "x": _w((lambda *s: torch.randn(*s, dtype=torch.bfloat16) * 0.05)(B, S, D)),
            "w1": _w((lambda *s: torch.randn(*s, dtype=torch.bfloat16) * 0.8)(S, F) * (S ** -0.5)),
            "b1": _w((lambda *s: torch.randn(*s, dtype=torch.bfloat16) * 12.8)(F) * 0.02),
            "w2": _w((lambda *s: torch.randn(*s, dtype=torch.bfloat16) * 0.2)(F, S) * (F ** -0.5)),
            "b2": _w((lambda *s: torch.randn(*s, dtype=torch.bfloat16) * 3.2)(S) * 0.02),
        }
    _B_in = _B_setup()

    return {
        "A_x": _A_in["x"],
        "A_wq": _A_in["wq"],
        "A_wk": _A_in["wk"],
        "A_wv": _A_in["wv"],
        "A_wo": _A_in["wo"],
        "B_x": _B_in["x"],
        "B_w1": _B_in["w1"],
        "B_b1": _B_in["b1"],
        "B_w2": _B_in["w2"],
        "B_b2": _B_in["b2"],
    }

def reference(A_x, A_wq, A_wk, A_wv, A_wo, B_x, B_w1, B_b1, B_w2, B_b2):
    def _A_ref(x, wq, wk, wv, wo):
        B, S, D = x.shape
        H = 16
        Dh = D // H
        q = (lambda x, *d: x.permute(*d))((x @ wq).reshape(B, S, H, Dh), 0, 2, 1, 3)
        k = x @ wk
        v = x @ wv
        scores = torch.einsum("bhqd,bkd->bhqk", q, k) * (Dh ** -0.5)
        p = _softmax(scores, axis=-1)
        o = torch.einsum("bhqk,bkd->bhqd", p, v)
        return (lambda x, *d: x.permute(*d))(o, 0, 2, 1, 3).reshape(B, S, H * Dh) @ wo

    def _B_ref(x, w1, b1, w2, b2):
        B, S, D = x.shape
        h = _layernorm(x, axis=-1)
        u = torch.einsum("bsd,sf->bdf", h, w1) + b1
        u = _gelu(u)
        y = torch.einsum("bdf,fs->bds", u, w2) + b2
        return (lambda x, *d: x.permute(*d))(y, 0, 2, 1)

    x = A_x
    h = x + _A_ref(_layernorm(x, axis=-1), A_wq, A_wk, A_wv, A_wo)
    h2 = h + _B_ref(_layernorm(h, axis=-1), B_w1, B_b1, B_w2, B_b2)
    return h2
```

```python
from gen import *

def gen_gemm(a, which):
    k3 = which == 3
    name = f"k{which}_gemm_kernel"
    L = f"K{which}"
    kernel_begin(a, name)
    KD = 2048 if k3 else 1792
    NST = KD // 64
    XP = KD * 2
    WP = (1792 if k3 else 2048) * 2
    NGRP = 28 if k3 else 32
    LDS = 65536
    a("s_cmp_ge_u32 s2, 224")
    a(f"s_cbranch_scc1 {L}_DONE")
    a("s_and_b32 s33, s2, 7")
    a("s_lshr_b32 s34, s2, 3")
    a("s_mul_i32 s35, s34, 37")
    a("s_lshr_b32 s35, s35, 8")
    a("s_mul_i32 s36, s35, 7")
    a("s_sub_u32 s36, s34, s36")
    a("s_lshl_b32 s35, s35, 3")
    a("s_add_u32 s35, s35, s33")
    a(f"s_cmp_ge_u32 s35, {NGRP}")
    a(f"s_cbranch_scc1 {L}_DONE")
    a(f"s_load_dwordx2 s[4:5], s[0:1], {48 if k3 else 64}")
    a(f"s_load_dwordx2 s[6:7], s[0:1], {56 if k3 else 72}")
    a("s_load_dwordx2 s[8:9], s[0:1], 80")
    a("s_load_dwordx2 s[12:13], s[0:1], 96")
    a("v_lshrrev_b32 v1, 6, v0")
    a("v_and_b32 v2, 63, v0")
    a("s_nop 0")
    a("v_readfirstlane_b32 s32, v1")
    a("s_waitcnt lgkmcnt(0)")
    srd(a, 16, 4, KD * WP)
    srd(a, 20, 6, (1792 if k3 else 2048) * 2)
    srd(a, 24, 8, 2048 * 896)
    srd(a, 28, 12, WS_SIZE)
    XOFF = WS_HNT if k3 else WS_U
    a("v_lshrrev_b32 v3, 3, v2")
    a("s_lshl_b32 s37, s32, 3")
    a("v_add_u32 v3, s37, v3")
    a("v_and_b32 v4, 7, v2")
    a("v_bfe_u32 v5, v3, 1, 3")
    a("v_xor_b32 v5, v5, v4")
    a(f"s_mov_b32 s38, {XP}")
    a("v_mul_lo_u32 v6, v3, s38")
    a("v_lshl_add_u32 v6, v5, 4, v6")
    a(f"v_add_u32 v7, {32*XP}, v6")
    a("v_bfe_u32 v5, v3, 1, 1")
    a("v_lshlrev_b32 v5, 2, v5")
    a("v_xor_b32 v5, v5, v4")
    a(f"s_mov_b32 s38, {WP}")
    a("v_mul_lo_u32 v8, v3, s38")
    a("v_lshl_add_u32 v8, v5, 4, v8")
    a(f"v_add_u32 v9, {32*WP}, v8")
    a("s_mul_i32 s40, s36, %d" % (64 * XP))
    a(f"s_add_u32 s40, s40, {XOFF}")
    a("s_lshl_b32 s41, s35, 7")
    a("s_lshl_b32 s42, s32, 10")
    def dma(st):
        slot = (st & 3) * 16384
        a(f"s_add_u32 s43, s42, {slot}")
        a("s_mov_b32 m0, s43")
        a("s_add_u32 s43, s43, 4096")
        a("buffer_load_dwordx4 v6, s[28:31], s40 offen lds")
        a("s_mov_b32 m0, s43")
        a("s_add_u32 s43, s43, 4096")
        a("buffer_load_dwordx4 v7, s[28:31], s40 offen lds")
        a("s_mov_b32 m0, s43")
        a("s_add_u32 s43, s43, 4096")
        a("buffer_load_dwordx4 v8, s[16:19], s41 offen lds")
        a("s_mov_b32 m0, s43")
        a("s_add_u32 s40, s40, 128")
        a("buffer_load_dwordx4 v9, s[16:19], s41 offen lds")
        a(f"s_add_u32 s41, s41, {64*WP}")
    for st in range(3):
        dma(st)
    a("s_and_b32 s44, s32, 1")
    a("s_lshr_b32 s45, s32, 1")
    a("v_and_b32 v10, 31, v2")
    a("s_lshl_b32 s46, s44, 5")
    a("v_add_u32 v10, s46, v10")
    a("v_lshrrev_b32 v11, 5, v2")
    a("v_bfe_u32 v12, v10, 1, 3")
    a("v_xor_b32 v12, v12, v11")
    a("v_lshlrev_b32 v12, 4, v12")
    a("v_lshl_add_u32 v12, v10, 7, v12")
    for kk in range(1, 4):
        a(f"v_xor_b32 v{12+kk}, {kk*32}, v12")
    a("v_bfe_u32 v16, v2, 2, 2")
    a("v_lshl_add_u32 v16, v11, 3, v16")
    a("v_lshlrev_b32 v16, 7, v16")
    a("v_bfe_u32 v17, v2, 4, 1")
    a("v_and_b32 v18, 3, v2")
    a("v_lshlrev_b32 v18, 3, v18")
    a("v_lshl_add_u32 v17, v17, 5, v18")
    a("s_lshl_b32 s46, s45, 6")
    a("v_add_u32 v17, s46, v17")
    a("v_bfe_u32 v18, v2, 3, 1")
    a("v_lshlrev_b32 v18, 6, v18")
    a("v_xor_b32 v17, v17, v18")
    a("v_add_u32 v16, v16, v17")
    a("v_add_u32 v16, 8192, v16")
    if k3:
        a("v_lshlrev_b32 v19, 3, v11")
        a("s_lshl_b32 s46, s35, 7")
        a("s_lshl_b32 s47, s45, 6")
        a("s_add_u32 s46, s46, s47")
    ACC = 64
    FB = [32, 40]
    for st in range(NST):
        rem = min(2, NST - 1 - st) * 4
        a(f"s_waitcnt vmcnt({rem})")
        a("s_barrier")
        if st + 3 < NST:
            dma(st + 3)
        slot = (st & 3) * 16384
        def rd(kk):
            f = FB[kk & 1]
            a(f"ds_read_b64_tr_b16 v[{f}:{f+1}], v16 offset:{slot+kk*2048}")
            a(f"ds_read_b64_tr_b16 v[{f+2}:{f+3}], v16 offset:{slot+kk*2048+512}")
            a(f"ds_read_b128 v[{f+4}:{f+7}], v{12+kk} offset:{slot}")
        rd(0)
        for kk in range(4):
            if kk < 3:
                rd(kk + 1)
                a("s_waitcnt lgkmcnt(3)")
            else:
                a("s_waitcnt lgkmcnt(0)")
            f = FB[kk & 1]
            c = "0" if (st == 0 and kk == 0) else f"v[{ACC}:{ACC+15}]"
            if k3:
                a(f"v_mfma_f32_32x32x16_bf16 v[{ACC}:{ACC+15}], v[{f}:{f+3}], v[{f+4}:{f+7}], {c}")
            else:
                a(f"v_mfma_f32_32x32x16_bf16 v[{ACC}:{ACC+15}], v[{f+4}:{f+7}], v[{f}:{f+3}], {c}")
    a("v_and_b32 v10, 31, v2")
    if k3:
        for g in range(4):
            a(f"buffer_load_dwordx2 v[{32+2*g}:{33+2*g}], v19, s[20:23], s46 offen offset:{16*g}")
        a(f"v_mul_u32_u24 v20, 3584, v10")
        a("v_lshl_add_u32 v20, v11, 3, v20")
        a("s_lshl_b32 s47, s36, 1")
        a("s_add_u32 s47, s47, s44")
        a(f"s_mul_i32 s47, s47, {32*3584}")
        a("s_add_u32 s47, s47, s46")
        a(f"s_add_u32 s47, s47, {WS_U}")
        a("s_waitcnt vmcnt(0)")
        a("s_nop 7")
        for g in range(4):
            b = ACC + 4 * g
            a(f"v_cvt_pk_bf16_f32 v40, v{b}, v{b+1}")
            a(f"v_cvt_pk_bf16_f32 v41, v{b+2}, v{b+3}")
            a("v_lshlrev_b32 v42, 16, v40")
            a("v_and_b32 v43, 0xffff0000, v40")
            a("v_lshlrev_b32 v44, 16, v41")
            a("v_and_b32 v45, 0xffff0000, v41")
            a(f"v_lshlrev_b32 v46, 16, v{32+2*g}")
            a(f"v_and_b32 v47, 0xffff0000, v{32+2*g}")
            a(f"v_lshlrev_b32 v48, 16, v{33+2*g}")
            a(f"v_and_b32 v49, 0xffff0000, v{33+2*g}")
            for i in range(4):
                a(f"v_add_f32 v{42+i}, v{42+i}, v{46+i}")
            a("v_cvt_pk_bf16_f32 v40, v42, v43")
            a("v_cvt_pk_bf16_f32 v41, v44, v45")
            a("v_lshlrev_b32 v42, 16, v40")
            a("v_and_b32 v43, 0xffff0000, v40")
            a("v_lshlrev_b32 v44, 16, v41")
            a("v_and_b32 v45, 0xffff0000, v41")
            for i in range(4):
                a(f"v_mul_f32 v{46+i}, v{42+i}, v{42+i}")
            for i in range(4):
                a(f"v_mov_b32 v{50+i}, 0x40135761")
                a(f"v_fmac_f32 v{50+i}, 0x3dd2d3e8, v{46+i}")
            for i in range(4):
                a(f"v_mul_f32 v{50+i}, v{50+i}, v{42+i}")
            for i in range(4):
                a(f"v_exp_f32 v{50+i}, -v{50+i}")
            a("s_nop 0")
            for i in range(4):
                a(f"v_add_f32 v{50+i}, 1.0, v{50+i}")
            for i in range(4):
                a(f"v_rcp_f32 v{50+i}, v{50+i}")
            a("s_nop 0")
            for i in range(4):
                a(f"v_mul_f32 v{42+i}, v{42+i}, v{50+i}")
            a("v_cvt_pk_bf16_f32 v54, v42, v43")
            a("v_cvt_pk_bf16_f32 v55, v44, v45")
            a(f"buffer_store_dwordx2 v[54:55], v20, s[28:31], s47 offen offset:{16*g}")
            a("s_nop 1")
    else:
        a(f"v_mul_u32_u24 v20, 896, v10")
        a("v_lshl_add_u32 v20, v11, 3, v20")
        a("s_lshl_b32 s46, s35, 1")
        a("s_add_u32 s46, s46, s45")
        a("s_mul_i32 s47, s46, 28672")
        a("s_lshl_b32 s48, s36, 7")
        a("s_add_u32 s47, s47, s48")
        a("s_lshl_b32 s48, s44, 6")
        a("s_add_u32 s47, s47, s48")
        a(f"s_add_u32 s48, s47, {WS_H}")
        for g in range(4):
            a(f"buffer_load_dwordx2 v[{32+2*g}:{33+2*g}], v20, s[28:31], s48 offen offset:{16*g}")
        a("v_lshlrev_b32 v21, 1, v10")
        a("s_lshl_b32 s46, s46, 6")
        a("buffer_load_ushort v22, v21, s[20:23], s46 offen")
        a("s_waitcnt vmcnt(0)")
        a("v_lshlrev_b32 v22, 16, v22")
        a("s_nop 7")
        for g in range(4):
            b = ACC + 4 * g
            a(f"v_cvt_pk_bf16_f32 v40, v{b}, v{b+1}")
            a(f"v_cvt_pk_bf16_f32 v41, v{b+2}, v{b+3}")
            a("v_lshlrev_b32 v42, 16, v40")
            a("v_and_b32 v43, 0xffff0000, v40")
            a("v_lshlrev_b32 v44, 16, v41")
            a("v_and_b32 v45, 0xffff0000, v41")
            for i in range(4):
                a(f"v_add_f32 v{42+i}, v{42+i}, v22")
            a("v_cvt_pk_bf16_f32 v40, v42, v43")
            a("v_cvt_pk_bf16_f32 v41, v44, v45")
            a("v_lshlrev_b32 v42, 16, v40")
            a("v_and_b32 v43, 0xffff0000, v40")
            a("v_lshlrev_b32 v44, 16, v41")
            a("v_and_b32 v45, 0xffff0000, v41")
            a(f"v_lshlrev_b32 v46, 16, v{32+2*g}")
            a(f"v_and_b32 v47, 0xffff0000, v{32+2*g}")
            a(f"v_lshlrev_b32 v48, 16, v{33+2*g}")
            a(f"v_and_b32 v49, 0xffff0000, v{33+2*g}")
            for i in range(4):
                a(f"v_add_f32 v{42+i}, v{42+i}, v{46+i}")
            a("v_cvt_pk_bf16_f32 v54, v42, v43")
            a("v_cvt_pk_bf16_f32 v55, v44, v45")
            a(f"buffer_store_dwordx2 v[54:55], v20, s[24:27], s47 offen offset:{16*g}")
            a("s_nop 1")
    a.label(f"{L}_DONE")
    a("s_endpgm")
    kernel_desc(a, name, 96)
    return name, (224, 1, 1), (256, 1, 1), LDS

def gen_k3(a): return gen_gemm(a, 3)
def gen_k4(a): return gen_gemm(a, 4)
```

```python
from gen import *

def gen_k2(a):
    name = "k2_attn_kernel"
    kernel_begin(a, name)
    LDS = 163840
    VB = 131072
    MX = VB + 8192
    a("s_cmp_ge_u32 s2, 256")
    a("s_cbranch_scc1 K2_DONE")
    a("s_load_dwordx2 s[4:5], s[0:1], 0")
    a("s_load_dwordx2 s[6:7], s[0:1], 32")
    a("s_load_dwordx2 s[12:13], s[0:1], 96")
    a("v_lshrrev_b32 v1, 6, v0")
    a("v_and_b32 v2, 63, v0")
    a("s_nop 0")
    a("v_readfirstlane_b32 s32, v1")
    a("s_waitcnt lgkmcnt(0)")
    a("s_and_b32 s33, s32, 3")
    a("s_lshr_b32 s34, s32, 2")
    srd(a, 16, 4, 2048 * 896)
    srd(a, 20, 6, 448 * 896)
    srd(a, 28, 12, WS_SIZE)
    a("v_and_b32 v3, 7, v2")
    a("v_lshlrev_b32 v3, 10, v3")
    a("v_bfe_u32 v4, v2, 3, 2")
    a("v_lshl_add_u32 v3, v4, 6, v3")
    a("v_lshrrev_b32 v5, 5, v2")
    a("v_lshl_add_u32 v3, v5, 4, v3")
    a("s_lshl_b32 s35, s2, 13")
    a("s_lshl_b32 s36, s33, 8")
    a("s_add_u32 s35, s35, s36")
    a("buffer_load_dwordx4 v[16:19], v3, s[28:31], s35 offen")
    a("buffer_load_dwordx4 v[20:23], v3, s[28:31], s35 offen offset:32")
    a("v_lshlrev_b32 v6, 4, v2")
    a("s_lshl_b32 s36, s34, 16")
    a("s_lshl_b32 s37, s33, 10")
    a("s_add_u32 s36, s36, s37")
    a(f"s_add_u32 s37, s36, {WS_K}")
    for r in range(16):
        a("s_mov_b32 m0, s36")
        a("s_add_u32 s36, s36, 4096")
        a("buffer_load_dwordx4 v6, s[28:31], s37 offen lds")
        a("s_add_u32 s37, s37, 4096")
    a("s_lshl_b32 s38, s34, 16")
    a("s_lshl_b32 s39, s33, 10")
    a("s_add_u32 s38, s38, s39")
    a(f"s_add_u32 s38, s38, {WS_V}")
    a("s_lshl_b32 s40, s34, 14")
    a("s_add_u32 s39, s39, s40")
    a(f"s_add_u32 s39, s39, {VB}")
    def vdma(c):
        sl = (c & 1) * 8192
        a(f"s_add_u32 s40, s39, {sl}")
        a(f"s_add_u32 s41, s38, {c*8192}")
        a("s_mov_b32 m0, s40")
        a("s_add_u32 s40, s40, 4096")
        a("buffer_load_dwordx4 v6, s[28:31], s41 offen lds")
        a("s_add_u32 s41, s41, 4096")
        a("s_mov_b32 m0, s40")
        a("s_nop 0")
        a("buffer_load_dwordx4 v6, s[28:31], s41 offen lds")
    vdma(0)
    a("s_lshl_b32 s40, s34, 16")
    a("v_add_u32 v7, s40, v6")
    a("s_lshl_b32 s40, s34, 14")
    a(f"s_add_u32 s40, s40, {VB}")
    a("v_add_u32 v8, s40, v6")
    a("v_mov_b32 v104, 0xff800000")
    S = [24, 40]
    KB = [80, 88]
    for ph in range(4):
        a(f"s_waitcnt vmcnt({14-4*ph})")
        a("s_barrier")
        def rdK(t):
            kb = KB[t & 1]
            a(f"ds_read_b128 v[{kb}:{kb+3}], v7 offset:{t*2048}")
            a(f"ds_read_b128 v[{kb+4}:{kb+7}], v7 offset:{t*2048+1024}")
        t0 = ph * 8
        rdK(t0)
        for t in range(t0, t0 + 8):
            if t + 1 < t0 + 8:
                rdK(t + 1)
                a("s_waitcnt lgkmcnt(2)")
            else:
                a("s_waitcnt lgkmcnt(0)")
            kb = KB[t & 1]; s = S[t & 1]
            a(f"v_mfma_f32_32x32x16_bf16 v[{s}:{s+15}], v[{kb}:{kb+3}], v[16:19], 0")
            a(f"v_mfma_f32_32x32x16_bf16 v[{s}:{s+15}], v[{kb+4}:{kb+7}], v[20:23], v[{s}:{s+15}]")
            if t > t0:
                sp = S[(t - 1) & 1]
                for i in range(8):
                    a(f"v_max3_f32 v104, v104, v{sp+2*i}, v{sp+2*i+1}")
        a("s_nop 15")
        sp = S[(t0 + 7) & 1]
        for i in range(8):
            a(f"v_max3_f32 v104, v104, v{sp+2*i}, v{sp+2*i+1}")
    a("v_lshlrev_b32 v9, 2, v2")
    a("s_lshl_b32 s40, s32, 8")
    a(f"s_add_u32 s40, s40, {MX}")
    a("v_add_u32 v10, s40, v9")
    a("ds_write_b32 v10, v104")
    a("s_waitcnt lgkmcnt(0)")
    a("s_barrier")
    a("v_and_b32 v10, 31, v2")
    a("v_lshlrev_b32 v10, 2, v10")
    a("s_lshl_b32 s40, s33, 8")
    a(f"s_add_u32 s40, s40, {MX}")
    a("v_add_u32 v10, s40, v10")
    a("ds_read_b32 v105, v10")
    a("ds_read_b32 v106, v10 offset:128")
    a("ds_read_b32 v107, v10 offset:1024")
    a("ds_read_b32 v108, v10 offset:1152")
    a("s_waitcnt lgkmcnt(0)")
    a("v_max3_f32 v104, v105, v106, v107")
    a("v_max_f32 v104, v104, v108")
    a("s_barrier")
    vdma(1)
    a("v_sub_f32 v105, 0, v104")
    a("v_cvt_pk_bf16_f32 v106, v105, v105")
    a("v_lshlrev_b32 v107, 16, v106")
    a("v_sub_f32 v107, v105, v107")
    a("v_cvt_pk_bf16_f32 v107, v107, v107")
    a("v_and_b32 v106, 0xffff, v106")
    a("v_lshl_or_b32 v106, v107, 16, v106")
    a("s_mov_b32 s42, 0")
    a("s_mov_b32 s43, -1")
    a("v_cndmask_b32 v22, v22, v106, s[42:43]")
    P = 56; O = 64; VBUF = 96
    def rdK2(t):
        kb = KB[t & 1]
        a(f"ds_read_b128 v[{kb}:{kb+3}], v7 offset:{t*2048}")
        a(f"ds_read_b128 v[{kb+4}:{kb+7}], v7 offset:{t*2048+1024}")
    def mmS(t):
        kb = KB[t & 1]; s = S[t & 1]
        a(f"v_mfma_f32_32x32x16_bf16 v[{s}:{s+15}], v[{kb}:{kb+3}], v[16:19], 0")
        a(f"v_mfma_f32_32x32x16_bf16 v[{s}:{s+15}], v[{kb+4}:{kb+7}], v[20:23], v[{s}:{s+15}]")
    rdK2(0)
    rdK2(1)
    a("s_waitcnt lgkmcnt(2)")
    mmS(0)
    for t in range(32):
        c = t >> 2; tl = t & 3
        if tl == 0:
            a("s_waitcnt vmcnt(0)")
            a("s_barrier")
            if 1 <= c < 7:
                vdma(c + 1)
        voff = (c & 1) * 8192 + tl * 2048
        a(f"ds_read_b128 v[{VBUF}:{VBUF+3}], v8 offset:{voff}")
        a(f"ds_read_b128 v[{VBUF+4}:{VBUF+7}], v8 offset:{voff+1024}")
        if t + 1 < 32:
            a("s_waitcnt lgkmcnt(2)")
            mmS(t + 1)
        if t + 2 < 32:
            rdK2(t + 2)
        else:
            a("s_nop 7")
        s = S[t & 1]
        for i in range(16):
            a(f"v_exp_f32 v{s+i}, v{s+i}")
        for i in range(8):
            a(f"v_cvt_pk_bf16_f32 v{P+i}, v{s+2*i}, v{s+2*i+1}")
        if t + 2 < 32:
            a("s_waitcnt lgkmcnt(2)")
        else:
            a("s_waitcnt lgkmcnt(0)")
        cc = "0" if t == 0 else f"v[{O}:{O+15}]"
        a(f"v_mfma_f32_32x32x16_bf16 v[{O}:{O+15}], v[{VBUF}:{VBUF+3}], v[{P}:{P+3}], {cc}")
        a(f"v_mfma_f32_32x32x16_bf16 v[{O}:{O+15}], v[{VBUF+4}:{VBUF+7}], v[{P+4}:{P+7}], v[{O}:{O+15}]")
    OP = 0; OPP = 144
    OA = 36864; OAP = 912
    WO = 51456; WOS = 28672
    HT = 0; HTP = 1808
    ST = 16384
    a("s_barrier")
    a(f"s_lshl_b32 s44, s32, 12")
    def wodma(ks):
        slot = ks % 3
        a("s_cmp_ge_u32 s32, 7")
        a(f"s_cbranch_scc1 K2_WOD{ks}")
        a(f"s_add_u32 s40, s44, {WO+slot*WOS}")
        a(f"s_add_u32 s41, s44, {ks*WOS}")
        for i in range(4):
            a("s_mov_b32 m0, s40")
            a("s_add_u32 s40, s40, 1024")
            a("buffer_load_dwordx4 v6, s[20:23], s41 offen lds")
            a("s_add_u32 s41, s41, 1024")
        a.label(f"K2_WOD{ks}")
    wodma(0); wodma(1); wodma(2)
    a("v_and_b32 v10, 15, v2")
    a("v_lshrrev_b32 v11, 4, v2")
    a("s_movk_i32 s40, 896")
    a("v_mul_lo_u32 v12, v10, s40")
    a("v_lshl_add_u32 v12, v11, 3, v12")
    a("s_mul_i32 s40, s2, 7168")
    a("s_lshl_b32 s41, s32, 7")
    a("s_add_u32 s40, s40, s41")
    a("v_cmp_gt_u32 vcc, 8, v10")
    a("v_mov_b32 v13, 0x7fffffff")
    a("s_nop 0")
    a("v_cndmask_b32 v12, v13, v12, vcc")
    for mt in range(4):
        a(f"buffer_load_dwordx2 v[{112+2*mt}:{113+2*mt}], v12, s[16:19], s40 offen offset:{32*mt}")
    a("s_nop 7")
    a("v_and_b32 v14, 31, v2")
    a(f"v_mul_u32_u24 v14, {OPP}, v14")
    a("v_lshl_add_u32 v14, v5, 4, v14")
    a(f"s_mul_i32 s40, s32, {32*OPP}")
    a("v_add_u32 v14, s40, v14")
    for g4 in range(4):
        a(f"ds_write_b128 v14, v[{O+4*g4}:{O+4*g4+3}] offset:{OP+32*g4}")
    a("s_waitcnt lgkmcnt(0)")
    a("s_barrier")
    a("v_lshrrev_b32 v14, 2, v0")
    a("v_and_b32 v15, 3, v0")
    a(f"v_mul_u32_u24 v16, {OPP}, v14")
    a("v_lshl_add_u32 v17, v15, 5, v16")
    a(f"ds_read_b128 v[24:27], v17 offset:{OP}")
    a(f"ds_read_b128 v[28:31], v17 offset:{OP+16}")
    a(f"ds_read_b128 v[32:35], v17 offset:{OP+128*OPP}")
    a(f"ds_read_b128 v[36:39], v17 offset:{OP+128*OPP+16}")
    a(f"ds_read_b32 v40, v16 offset:{OP+112}")
    a(f"ds_read_b32 v41, v16 offset:{OP+128*OPP+112}")
    a("s_waitcnt lgkmcnt(0)")
    a("v_add_f32 v40, v40, v41")
    a("v_rcp_f32 v40, v40")
    for i in range(8):
        a(f"v_add_f32 v{24+i}, v{24+i}, v{32+i}")
    for i in range(8):
        a(f"v_mul_f32 v{24+i}, v{24+i}, v40")
    for i in range(4):
        a(f"v_cvt_pk_bf16_f32 v{24+i}, v{24+2*i}, v{25+2*i}")
    a("v_and_b32 v16, 7, v14")
    a(f"v_mul_u32_u24 v16, {OAP}, v16")
    a("v_lshrrev_b32 v17, 3, v14")
    a("v_mul_u32_u24 v17, 56, v17")
    a("v_add_u32 v16, v16, v17")
    a("v_lshl_add_u32 v16, v15, 4, v16")
    a(f"ds_write_b64 v16, v[24:25] offset:{OA}")
    a("v_cmp_gt_u32 vcc, 3, v15")
    a("s_and_saveexec_b64 s[46:47], vcc")
    a(f"ds_write_b64 v16, v[26:27] offset:{OA+8}")
    a("s_mov_b64 exec, s[46:47]")
    a(f"v_mul_u32_u24 v16, {OAP}, v10")
    a("v_lshl_add_u32 v16, v11, 4, v16")
    a("v_bfe_u32 v17, v2, 2, 2")
    a("v_lshl_add_u32 v17, v11, 3, v17")
    a("v_mul_u32_u24 v17, 896, v17")
    a("v_and_b32 v18, 3, v2")
    a("v_lshl_add_u32 v17, v18, 3, v17")
    a("s_lshl_b32 s40, s32, 7")
    a(f"s_add_u32 s40, s40, {WO}")
    a("v_add_u32 v17, s40, v17")
    ACC = 64
    for ks in range(14):
        slot = ks % 3
        rem = min(2, 13 - ks) * 4
        a(f"s_waitcnt vmcnt({rem}) lgkmcnt(0)")
        a("s_barrier")
        a("s_cmp_ge_u32 s32, 7")
        a(f"s_cbranch_scc1 K2_OPS{ks}")
        a(f"ds_read_b128 v[24:27], v16 offset:{OA+ks*64}")
        for mt in range(4):
            a(f"ds_read_b64_tr_b16 v[{28+4*mt}:{29+4*mt}], v17 offset:{slot*WOS+32*mt}")
            a(f"ds_read_b64_tr_b16 v[{30+4*mt}:{31+4*mt}], v17 offset:{slot*WOS+32*mt+4*896}")
        for mt in range(4):
            a(f"s_waitcnt lgkmcnt({6-2*mt})")
            c = "0" if ks == 0 else f"v[{ACC+4*mt}:{ACC+4*mt+3}]"
            a(f"v_mfma_f32_16x16x32_bf16 v[{ACC+4*mt}:{ACC+4*mt+3}], v[{28+4*mt}:{31+4*mt}], v[24:27], {c}")
        a.label(f"K2_OPS{ks}")
        if ks + 3 < 14:
            a("s_barrier")
            wodma(ks + 3)
    a("s_nop 15")
    a("s_cmp_ge_u32 s32, 7")
    a("s_cbranch_scc1 K2_HS")
    for mt in range(4):
        b = ACC + 4 * mt
        a(f"v_cvt_pk_bf16_f32 v24, v{b}, v{b+1}")
        a(f"v_cvt_pk_bf16_f32 v25, v{b+2}, v{b+3}")
        a(f"v_lshlrev_b32 v26, 16, v24")
        a(f"v_and_b32 v27, 0xffff0000, v24")
        a(f"v_lshlrev_b32 v28, 16, v25")
        a(f"v_and_b32 v29, 0xffff0000, v25")
        xr = 112 + 2 * mt
        a(f"v_lshlrev_b32 v30, 16, v{xr}")
        a(f"v_and_b32 v31, 0xffff0000, v{xr}")
        a(f"v_lshlrev_b32 v32, 16, v{xr+1}")
        a(f"v_and_b32 v33, 0xffff0000, v{xr+1}")
        for i in range(4):
            a(f"v_add_f32 v{26+i}, v{26+i}, v{30+i}")
        a(f"v_cvt_pk_bf16_f32 v24, v26, v27")
        a(f"v_cvt_pk_bf16_f32 v25, v28, v29")
        a(f"v_lshlrev_b32 v{b}, 16, v24")
        a(f"v_and_b32 v{b+1}, 0xffff0000, v24")
        a(f"v_lshlrev_b32 v{b+2}, 16, v25")
        a(f"v_and_b32 v{b+3}, 0xffff0000, v25")
    a(f"v_mul_u32_u24 v24, {HTP}, v10")
    a("v_lshl_add_u32 v24, v11, 4, v24")
    a("s_lshl_b32 s40, s32, 8")
    a("v_add_u32 v24, s40, v24")
    a("v_cmp_gt_u32 vcc, 8, v10")
    a("s_and_saveexec_b64 s[46:47], vcc")
    for mt in range(4):
        a(f"ds_write_b128 v24, v[{ACC+4*mt}:{ACC+4*mt+3}] offset:{HT+64*mt}")
    a("s_mov_b64 exec, s[46:47]")
    a.label("K2_HS")
    a("s_waitcnt lgkmcnt(0)")
    a("s_barrier")
    a("v_lshlrev_b32 v24, 5, v2")
    a(f"s_mul_i32 s40, s32, {HTP}")
    a("v_add_u32 v24, s40, v24")
    for i in range(8):
        a(f"v_mov_b32 v{32+i}, 0")
    a("v_cmp_gt_u32 vcc, 56, v2")
    a("s_and_saveexec_b64 s[46:47], vcc")
    a(f"ds_read_b128 v[32:35], v24 offset:{HT}")
    a(f"ds_read_b128 v[36:39], v24 offset:{HT+16}")
    a("s_waitcnt lgkmcnt(0)")
    a("s_mov_b64 exec, s[46:47]")
    a("v_add_f32 v40, v32, v33")
    for i in range(2, 8):
        a(f"v_add_f32 v40, v40, v{32+i}")
    def wave_sum(v, s):
        for sh in (1, 2, 4, 8):
            a("s_nop 1")
            a(f"v_mov_b32 v41, 0")
            a("s_nop 1")
            a(f"v_mov_b32 v41, v{v} row_shr:{sh} row_mask:0xf bank_mask:0xf")
            a("s_nop 1")
            a(f"v_add_f32 v{v}, v{v}, v41")
        a("s_nop 1")
        a(f"v_readlane_b32 s{s}, v{v}, 15")
        a(f"v_readlane_b32 s{s+1}, v{v}, 31")
        a(f"v_readlane_b32 s{s+2}, v{v}, 47")
        a(f"v_readlane_b32 s{s+3}, v{v}, 63")
        a("s_nop 3")
        a(f"v_mov_b32 v41, s{s}")
        a(f"v_add_f32 v41, s{s+1}, v41")
        a(f"v_add_f32 v41, s{s+2}, v41")
        a(f"v_add_f32 v41, s{s+3}, v41")
    wave_sum(40, 48)
    a("v_mul_f32 v42, 0x3b124925, v41")
    a("v_mov_b32 v40, 0")
    a("s_and_saveexec_b64 s[46:47], vcc")
    for i in range(8):
        a(f"v_sub_f32 v{44+i}, v{32+i}, v42")
    a("v_mul_f32 v40, v44, v44")
    for i in range(1, 8):
        a(f"v_fmac_f32 v40, v{44+i}, v{44+i}")
    for i in range(4):
        a(f"v_cvt_pk_bf16_f32 v{52+i}, v{32+2*i}, v{33+2*i}")
    a("v_lshlrev_b32 v25, 4, v2")
    a("s_lshl_b32 s40, s2, 3")
    a("s_add_u32 s40, s40, s32")
    a("s_mul_i32 s40, s40, 896")
    a(f"s_add_u32 s40, s40, {WS_H}")
    a("buffer_store_dwordx4 v[52:55], v25, s[28:31], s40 offen")
    a("s_mov_b64 exec, s[46:47]")
    wave_sum(40, 48)
    a("v_mov_b32 v43, 0x3727c5ac")
    a("v_fmac_f32 v43, 0x3b124925, v41")
    a("v_rsq_f32 v43, v43")
    a("s_lshl_b32 s40, s32, 3")
    a(f"s_add_u32 s40, s40, {ST}")
    a("v_mov_b32 v25, s40")
    a("v_cmp_eq_u32 vcc, 0, v2")
    a("s_and_saveexec_b64 s[46:47], vcc")
    a("ds_write_b64 v25, v[42:43]")
    a("s_mov_b64 exec, s[46:47]")
    a("s_waitcnt lgkmcnt(0)")
    a("s_barrier")
    a("v_cmp_gt_u32 vcc, 448, v0")
    a("s_and_saveexec_b64 s[46:47], vcc")
    a("s_cbranch_execz K2_DONE")
    a("v_lshlrev_b32 v24, 2, v0")
    for t in range(8):
        a(f"ds_read_b32 v{32+t}, v24 offset:{HT+t*HTP}")
    a(f"v_mov_b32 v25, {ST}")
    for t in range(4):
        a(f"ds_read_b128 v[{48+4*t}:{51+4*t}], v25 offset:{16*t}")
    a("s_waitcnt lgkmcnt(0)")
    for t in range(8):
        a(f"v_sub_f32 v{32+t}, v{32+t}, v{48+2*t}")
        a(f"v_mul_f32 v{32+t}, v{32+t}, v{49+2*t}")
    for i in range(4):
        a(f"v_cvt_pk_bf16_f32 v{40+i}, v{32+2*i}, v{33+2*i}")
    a("v_lshlrev_b32 v25, 12, v0")
    a("s_lshl_b32 s40, s2, 4")
    a(f"s_add_u32 s40, s40, {WS_HNT}")
    a("buffer_store_dwordx4 v[40:43], v25, s[28:31], s40 offen")
    a.label("K2_DONE")
    a("s_endpgm")
    kernel_desc(a, name, 128)
    return name, (256, 1, 1), (512, 1, 1), LDS
```

```python
import sys

NAME = "sequential_preLN__grouped_kv_mqa__mixer_token_mlp__prompt"

HEADER = """; Kernarg layout for this problem (104 bytes, ptrs only, base s[0:1]):
"""

WS_Q = 0
WS_K = 2 << 20
WS_V = WS_K + (128 << 10)
WS_H = 3 << 20
WS_HNT = 5 << 20
WS_U = 7 << 20
WS_SIZE = 268435456


class Asm:
    def __init__(self):
        self.lines = []
    def __call__(self, s):
        self.lines.append("    " + s)
    def label(self, s):
        self.lines.append(s + ":")
    def raw(self, s):
        self.lines.append(s)
    def text(self):
        return "\n".join(self.lines) + "\n"


def kernel_begin(a, name):
    a.raw(".text")
    a.raw(f".globl {name}")
    a.raw(".p2align 8")
    a.raw(f".type {name},@function")
    a.label(name)


def kernel_desc(a, name, vgpr, sgpr=102, accum=None):
    if accum is None:
        accum = (vgpr + 3) // 4 * 4
    a.raw('.section .rodata,"a"')
    a.raw(".p2align 6")
    a.raw(f".amdhsa_kernel {name}")
    a.raw(f"  .amdhsa_next_free_vgpr {vgpr}")
    a.raw(f"  .amdhsa_next_free_sgpr {sgpr}")
    a.raw(f"  .amdhsa_accum_offset {accum}")
    a.raw("  .amdhsa_group_segment_fixed_size 0")
    a.raw("  .amdhsa_kernarg_size 104")
    a.raw("  .amdhsa_user_sgpr_count 2")
    a.raw("  .amdhsa_user_sgpr_kernarg_segment_ptr 1")
    a.raw("  .amdhsa_system_sgpr_workgroup_id_x 1")
    a.raw(".end_amdhsa_kernel")


def srd(a, d, b, nbytes):
    a(f"s_mov_b32 s{d}, s{b}")
    a(f"s_and_b32 s{d+1}, s{b+1}, 0xffff")
    a(f"s_mov_b32 s{d+2}, 0x{nbytes:x}")
    a(f"s_mov_b32 s{d+3}, 0x00020000")


def gen_k1(a):
    name = "k1_qkv_kernel"
    kernel_begin(a, name)
    XN = 0
    XN_PITCH = 912
    WT = 29184
    KV = WT + 102400
    LDS = KV + 25600 + 256
    a("s_cmp_ge_u32 s2, 256")
    a("s_cbranch_scc1 K1_DONE")
    a("s_load_dwordx4 s[4:7], s[0:1], 0")
    a("s_load_dwordx4 s[8:11], s[0:1], 16")
    a("s_load_dwordx2 s[12:13], s[0:1], 96")
    a("s_lshr_b32 s14, s2, 2")
    a("s_and_b32 s15, s2, 3")
    a("v_lshrrev_b32 v1, 6, v0")
    a("v_and_b32 v2, 63, v0")
    a("s_nop 0")
    a("v_readfirstlane_b32 s32, v1")
    a("s_waitcnt lgkmcnt(0)")
    srd(a, 16, 4, 2048 * 896)
    srd(a, 20, 6, 448 * 896)
    a("s_cmp_eq_u32 s15, 0")
    a("s_cselect_b32 s24, s8, s10")
    a("s_cselect_b32 s25, s9, s11")
    a("s_and_b32 s25, s25, 0xffff")
    a("s_mov_b32 s26, 25088")
    a("s_mov_b32 s27, 0x00020000")
    srd(a, 28, 12, WS_SIZE)
    a("s_cmp_ge_u32 s32, 4")
    a("s_cbranch_scc1 K1_SKIPX")
    a("v_lshrrev_b32 v3, 3, v0")
    a("v_and_b32 v4, 7, v0")
    a("s_lshl_b32 s33, s14, 5")
    a("v_add_u32 v5, s33, v3")
    a("s_movk_i32 s34, 896")
    a("v_mul_lo_u32 v5, v5, s34")
    a("v_lshl_add_u32 v5, v4, 4, v5")
    for i in range(7):
        a(f"buffer_load_dwordx4 v[{32+4*i}:{35+4*i}], v5, s[16:19], 0 offen offset:{128*i}")
    a.label("K1_SKIPX")
    a("s_lshl_b32 s35, s32, 6")
    a("v_add_u32 v6, s35, v2")
    a("s_mul_i32 s36, s15, 224")
    a("s_mov_b32 s37, 37450")
    a(f"s_lshl_b32 s38, s32, 10")
    a(f"s_add_u32 s38, s38, {WT}")
    for it in range(20):
        a("v_mul_u32_u24 v7, s37, v6")
        a("v_lshrrev_b32 v7, 19, v7")
        a("v_mul_u32_u24 v7, 672, v7")
        a("v_lshl_add_u32 v7, v6, 4, v7")
        a("s_mov_b32 m0, s38")
        a("s_add_u32 s38, s38, 5120")
        a("buffer_load_dwordx4 v7, s[20:23], s36 offen lds")
        if it != 19:
            a("v_add_u32 v6, 320, v6")
    a("s_cmp_ge_u32 s15, 2")
    a("s_cbranch_scc1 K1_SKIPKV")
    a("v_add_u32 v7, s35, v2")
    a("v_lshlrev_b32 v7, 4, v7")
    a("s_lshl_b32 s38, s32, 10")
    a(f"s_add_u32 s38, s38, {KV}")
    for it in range(5):
        a("s_mov_b32 m0, s38")
        a("s_add_u32 s38, s38, 5120")
        a(f"buffer_load_dwordx4 v7, s[24:27], 0 offen lds")
        if it != 4:
            a("v_add_u32 v7, 5120, v7")
    a.label("K1_SKIPKV")
    a("s_cmp_ge_u32 s32, 4")
    a("s_cbranch_scc1 K1_SKIPLN")
    a("s_cmp_ge_u32 s15, 2")
    a("s_cbranch_scc1 K1_W20")
    a("s_waitcnt vmcnt(25)")
    a("s_branch K1_WD")
    a.label("K1_W20")
    a("s_waitcnt vmcnt(20)")
    a.label("K1_WD")
    for i in range(28):
        a(f"v_lshlrev_b32 v{64+2*i}, 16, v{32+i}")
        a(f"v_and_b32 v{65+2*i}, 0xffff0000, v{32+i}")
    a("v_add_f32 v8, v64, v65")
    a("v_add_f32 v9, v66, v67")
    for i in range(2, 28):
        a(f"v_add_f32 v{8+(i&1)}, v{8+(i&1)}, v{64+2*i}")
        a(f"v_add_f32 v{8+(i&1)}, v{8+(i&1)}, v{65+2*i}")
    a("v_add_f32 v8, v8, v9")

    def red8(v):
        a("s_nop 1")
        a(f"v_add_f32 v{v}, v{v}, v{v} quad_perm:[1,0,3,2] row_mask:0xf bank_mask:0xf")
        a("s_nop 1")
        a(f"v_add_f32 v{v}, v{v}, v{v} quad_perm:[2,3,0,1] row_mask:0xf bank_mask:0xf")
        a("s_nop 1")
        a(f"v_add_f32 v{v}, v{v}, v{v} row_half_mirror row_mask:0xf bank_mask:0xf")
    red8(8)
    a("v_mul_f32 v8, 0x3b124925, v8")
    for i in range(56):
        a(f"v_sub_f32 v{64+i}, v{64+i}, v8")
    a("v_mul_f32 v9, v64, v64")
    a("v_mul_f32 v10, v65, v65")
    for i in range(2, 56):
        a(f"v_fmac_f32 v{9+(i&1)}, v{64+i}, v{64+i}")
    a("v_add_f32 v9, v9, v10")
    red8(9)
    a("v_mov_b32 v10, 0x3727c5ac")
    a("v_fmac_f32 v10, 0x3b124925, v9")
    a("v_rsq_f32 v10, v10")
    a("s_nop 0")
    for i in range(56):
        a(f"v_mul_f32 v{64+i}, v{64+i}, v10")
    for i in range(28):
        a(f"v_cvt_pk_bf16_f32 v{32+i}, v{64+2*i}, v{65+2*i}")
    a(f"v_mul_u32_u24 v11, {XN_PITCH}, v3")
    a("v_lshl_add_u32 v11, v4, 4, v11")
    for i in range(7):
        a(f"ds_write_b128 v11, v[{32+4*i}:{35+4*i}] offset:{XN+128*i}")
    a.label("K1_SKIPLN")
    a("s_waitcnt vmcnt(0) lgkmcnt(0)")
    a("s_barrier")
    a("v_and_b32 v12, 31, v2")
    a(f"v_mul_u32_u24 v12, {XN_PITCH}, v12")
    a("v_lshrrev_b32 v13, 5, v2")
    a("v_lshl_add_u32 v12, v13, 4, v12")
    a("v_bfe_u32 v14, v2, 2, 2")
    a("v_lshl_add_u32 v14, v13, 3, v14")
    a("v_bfe_u32 v15, v2, 4, 1")
    a("v_and_b32 v16, 3, v2")
    a("v_lshlrev_b32 v16, 3, v16")
    a("v_lshl_add_u32 v15, v15, 5, v16")
    a("s_cmp_ge_u32 s32, 4")
    a("s_cbranch_scc1 K1_KV")

    def mm_loop(pitch, base_v, swap):
        half = 14
        a(f"v_add_u32 v17, {half*16*pitch}, v{base_v}")
        def issue(k):
            s = k & 1
            wr = 96 + 8 * s
            b = base_v if k < half else 17
            kk = k if k < half else k - half
            a(f"ds_read_b64_tr_b16 v[{wr}:{wr+1}], v{b} offset:{kk*16*pitch}")
            a(f"ds_read_b64_tr_b16 v[{wr+2}:{wr+3}], v{b} offset:{kk*16*pitch+4*pitch}")
            a(f"ds_read_b128 v[{wr+4}:{wr+7}], v12 offset:{XN+k*32}")
        issue(0)
        for k in range(28):
            if k + 1 < 28:
                issue(k + 1)
                a("s_waitcnt lgkmcnt(3)")
            else:
                a("s_waitcnt lgkmcnt(0)")
            s = k & 1
            wr = 96 + 8 * s
            c = "0" if k == 0 else "v[64:79]"
            if not swap:
                a(f"v_mfma_f32_32x32x16_bf16 v[64:79], v[{wr}:{wr+3}], v[{wr+4}:{wr+7}], {c}")
            else:
                a(f"v_mfma_f32_32x32x16_bf16 v[64:79], v[{wr+4}:{wr+7}], v[{wr}:{wr+3}], {c}")
        a("s_nop 15")

    a("v_mul_u32_u24 v18, 224, v14")
    a("v_add_u32 v18, v18, v15")
    a("s_mul_i32 s33, s32, 56")
    a(f"s_add_u32 s33, s33, {WT}")
    a("v_add_u32 v18, s33, v18")
    mm_loop(224, 18, False)
    a("s_mov_b32 s40, 0")
    a("s_mov_b32 s41, -1")
    for r in range(16):
        a(f"v_mul_f32 v{64+r}, 0x3e8b97f6, v{64+r}")
    for r in range(12, 16):
        a(f"v_cndmask_b32 v{64+r}, v{64+r}, 0, s[40:41]")
    for p in range(8):
        a(f"v_cvt_pk_bf16_f32 v{32+p}, v{64+2*p}, v{65+2*p}")
    a("v_and_b32 v20, 31, v2")
    a("v_lshlrev_b32 v20, 10, v20")
    a("v_lshl_add_u32 v20, v13, 3, v20")
    a("s_lshl_b32 s33, s14, 15")
    a("s_lshl_b32 s34, s15, 8")
    a("s_add_u32 s33, s33, s34")
    a("s_lshl_b32 s34, s32, 6")
    a("s_add_u32 s33, s33, s34")
    a(f"s_add_u32 s33, s33, {WS_Q}")
    for g in range(4):
        a(f"buffer_store_dwordx2 v[{32+2*g}:{33+2*g}], v20, s[28:31], s33 offen offset:{16*g}")
    a("s_branch K1_DONE")
    a.label("K1_KV")
    a("s_cmp_ge_u32 s15, 2")
    a("s_cbranch_scc1 K1_DONE")
    a("v_mul_u32_u24 v18, 56, v14")
    a("v_add_u32 v18, v18, v15")
    a(f"v_add_u32 v18, {KV}, v18")
    a("s_cmp_eq_u32 s15, 1")
    a("s_cbranch_scc1 K1_V")
    mm_loop(56, 18, False)
    for p in range(8):
        a(f"v_cvt_pk_bf16_f32 v{32+p}, v{64+2*p}, v{65+2*p}")
    a("s_mov_b32 s40, 0")
    a("s_mov_b32 s41, -1")
    a("v_mov_b32 v21, 0x3f803f80")
    a("v_cndmask_b32 v38, v38, v21, s[40:41]")
    a("v_cndmask_b32 v39, v39, 0, s[40:41]")
    a("v_and_b32 v20, 31, v2")
    a("v_lshlrev_b32 v20, 4, v20")
    a("v_lshl_add_u32 v20, v13, 3, v20")
    a("s_lshl_b32 s33, s14, 11")
    a(f"s_add_u32 s33, s33, {WS_K}")
    for g in range(4):
        a(f"buffer_store_dwordx2 v[{32+2*g}:{33+2*g}], v20, s[28:31], s33 offen offset:{(g>>1)*1024+(g&1)*512}")
    a("s_branch K1_DONE")
    a.label("K1_V")
    mm_loop(56, 18, True)
    a("v_and_b32 v20, 31, v2")
    a("v_cmp_eq_u32 s[40:41], 28, v20")
    a("v_cmp_lt_u32 s[42:43], 28, v20")
    a("s_nop 1")
    for r in range(16):
        a(f"v_cndmask_b32 v{64+r}, v{64+r}, 1.0, s[40:41]")
        a(f"v_cndmask_b32 v{64+r}, v{64+r}, 0, s[42:43]")
    for p in range(8):
        a(f"v_cvt_pk_bf16_f32 v{32+p}, v{64+2*p}, v{65+2*p}")
    a("v_lshlrev_b32 v20, 4, v2")
    a("s_lshl_b32 s33, s14, 11")
    a(f"s_add_u32 s33, s33, {WS_V}")
    a("buffer_store_dwordx4 v[32:35], v20, s[28:31], s33 offen")
    a("buffer_store_dwordx4 v[36:39], v20, s[28:31], s33 offen offset:1024")
    a.label("K1_DONE")
    a("s_endpgm")
    kernel_desc(a, name, 128)
    return name, (256, 1, 1), (320, 1, 1), LDS


def main():
    from gen_k2 import gen_k2
    from gen_gemm import gen_k3, gen_k4
    a = Asm()
    launches = []
    body = Asm()
    for g in (gen_k1, gen_k2, gen_k3, gen_k4):
        launches.append(g(body))
    out = HEADER
    for name, grid, block, lds in launches:
        out += f"; @launch kernel={name} grid=({grid[0]},{grid[1]},{grid[2]}) block=({block[0]},{block[1]},{block[2]}) lds={lds}\n"
    out += '.amdgcn_target "amdgcn-amd-amdhsa--gfx950"\n'
    out += body.text()
    open(sys.argv[1], "w").write(out)

if __name__ == '__main__':
    main()
```

```python
from gen import *
import os

def gen_gemm(a, which):
    k3 = which == 3
    name = f"k{which}_gemm_kernel"
    L = f"K{which}"
    kernel_begin(a, name)
    KD = 2048 if k3 else 1792
    NST = KD // 64
    WP = (1792 if k3 else 2048) * 2
    NGRP = 28 if k3 else 32
    NS = 8
    LDS = NS * 16384
    a("s_cmp_ge_u32 s2, 224")
    a(f"s_cbranch_scc1 {L}_DONE")
    a("s_and_b32 s33, s2, 7")
    a("s_lshr_b32 s34, s2, 3")
    a("s_mul_i32 s35, s34, 37")
    a("s_lshr_b32 s35, s35, 8")
    a("s_mul_i32 s36, s35, 7")
    a("s_sub_u32 s36, s34, s36")
    a("s_lshl_b32 s35, s35, 3")
    a("s_add_u32 s35, s35, s33")
    a(f"s_cmp_ge_u32 s35, {NGRP}")
    a(f"s_cbranch_scc1 {L}_DONE")
    a(f"s_load_dwordx2 s[4:5], s[0:1], {48 if k3 else 64}")
    a(f"s_load_dwordx2 s[6:7], s[0:1], {56 if k3 else 72}")
    a("s_load_dwordx2 s[8:9], s[0:1], 80")
    a("s_load_dwordx2 s[12:13], s[0:1], 96")
    a("v_lshrrev_b32 v1, 6, v0")
    a("v_and_b32 v2, 63, v0")
    a("s_nop 0")
    a("v_readfirstlane_b32 s32, v1")
    a("s_waitcnt lgkmcnt(0)")
    a("s_and_b32 s60, s32, 3")
    a("s_lshr_b32 s61, s32, 2")
    a("s_mov_b32 s32, s60")
    srd(a, 16, 4, KD * WP)
    srd(a, 20, 6, (1792 if k3 else 2048) * 2)
    srd(a, 24, 8, 2048 * 896)
    srd(a, 28, 12, WS_SIZE)
    TS = os.environ.get("TS")
    tsn = [0]
    if TS:
        a("s_load_dwordx2 s[70:71], s[0:1], 88")
        a("s_waitcnt lgkmcnt(0)")
        srd(a, 72, 70, 256)
    def ts():
        if not TS: return
        i = tsn[0]; tsn[0] += 1
        a("s_memtime s[76:77]")
        a("s_waitcnt lgkmcnt(0)")
        a("v_mov_b32 v60, s76")
        a("s_cmp_eq_u32 s2, %s" % TS)
        a(f"s_cbranch_scc0 {L}_TS{i}")
        a("s_cmp_eq_u32 s32, 0")
        a(f"s_cbranch_scc0 {L}_TS{i}")
        a(f"v_mov_b32 v61, {4*i}")
        a("buffer_store_dword v60, v61, s[72:75], 0 offen")
        a.label(f"{L}_TS{i}")
    XOFF = WS_HNT if k3 else WS_U
    a("v_lshrrev_b32 v3, 3, v2")
    a("s_lshl_b32 s37, s32, 3")
    a("v_add_u32 v3, s37, v3")
    a("v_and_b32 v4, 7, v2")
    a("v_lshlrev_b32 v6, 4, v2")
    a("s_lshl_b32 s38, s32, 10")
    a("v_add_u32 v6, s38, v6")
    a("v_add_u32 v7, 4096, v6")
    a("v_bfe_u32 v5, v3, 1, 1")
    a("v_lshlrev_b32 v5, 2, v5")
    a("v_xor_b32 v5, v5, v4")
    a(f"s_mov_b32 s38, {WP}")
    a("v_mul_lo_u32 v8, v3, s38")
    a("v_lshl_add_u32 v8, v5, 4, v8")
    a(f"v_add_u32 v9, {32*WP}, v8")
    a("s_mul_i32 s40, s36, %d" % (NST * 8192))
    a(f"s_add_u32 s40, s40, {XOFF}")
    a("s_lshl_b32 s41, s35, 7")
    a("s_lshl_b32 s42, s32, 10")
    def dma(st):
        slot = (st % NS) * 16384
        a(f"s_add_u32 s43, s42, {slot}")
        a("s_mov_b32 m0, s43")
        a("s_add_u32 s43, s43, 4096")
        a("buffer_load_dwordx4 v6, s[28:31], s40 offen lds")
        a("s_mov_b32 m0, s43")
        a("s_add_u32 s43, s43, 4096")
        a("buffer_load_dwordx4 v7, s[28:31], s40 offen lds")
        a("s_mov_b32 m0, s43")
        a("s_add_u32 s43, s43, 4096")
        a("buffer_load_dwordx4 v8, s[16:19], s41 offen lds")
        a("s_mov_b32 m0, s43")
        if not os.environ.get("SKIPX"): a("s_add_u32 s40, s40, 8192")
        else: a("s_nop 0")
        a("buffer_load_dwordx4 v9, s[16:19], s41 offen lds")
        if not os.environ.get("SKIPW"): a(f"s_add_u32 s41, s41, {64*WP}")
    a("s_cmp_eq_u32 s61, 0")
    a(f"s_cbranch_scc1 {L}_COMPUTE")
    for st in range(NS - 1):
        dma(st)
    a(f"s_waitcnt vmcnt({(NS-2)*4})")
    a("s_barrier")
    for st in range(NST):
        if st + 1 < NST:
            rem = (min(st + NS - 2, NST - 1) - (st + 1)) * 4
            a(f"s_waitcnt vmcnt({rem})")
        a("s_barrier")
        if st + NS - 1 < NST:
            dma(st + NS - 1)
    a("s_endpgm")
    a.label(f"{L}_COMPUTE")
    ts()
    a("s_and_b32 s44, s32, 1")
    a("s_lshr_b32 s45, s32, 1")
    a("v_and_b32 v10, 31, v2")
    a("s_lshl_b32 s46, s44, 5")
    a("v_add_u32 v10, s46, v10")
    a("v_lshrrev_b32 v11, 5, v2")
    a("v_bfe_u32 v12, v10, 1, 3")
    a("v_xor_b32 v12, v12, v11")
    a("v_lshlrev_b32 v12, 4, v12")
    a("v_lshl_add_u32 v12, v10, 7, v12")
    for kk in range(1, 4):
        a(f"v_xor_b32 v{12+kk}, {kk*32}, v12")
    a("v_bfe_u32 v16, v2, 2, 2")
    a("v_lshl_add_u32 v16, v11, 3, v16")
    a("v_lshlrev_b32 v16, 7, v16")
    a("v_bfe_u32 v17, v2, 4, 1")
    a("v_and_b32 v18, 3, v2")
    a("v_lshlrev_b32 v18, 3, v18")
    a("v_lshl_add_u32 v17, v17, 5, v18")
    a("s_lshl_b32 s46, s45, 6")
    a("v_add_u32 v17, s46, v17")
    a("v_bfe_u32 v18, v2, 3, 1")
    a("v_lshlrev_b32 v18, 6, v18")
    a("v_xor_b32 v17, v17, v18")
    a("v_add_u32 v16, v16, v17")
    a("v_add_u32 v16, 8192, v16")
    a("v_add_u32 v24, 0x10000, v16")
    for kk in range(4):
        a(f"v_add_u32 v{25+kk}, 0x10000, v{12+kk}")
    if k3:
        a("v_lshlrev_b32 v19, 3, v11")
        a("s_lshl_b32 s46, s35, 7")
        a("s_lshl_b32 s47, s45, 6")
        a("s_add_u32 s46, s46, s47")
    ACC = 64
    FS = [96, 128]
    def rd(st):
        slot = (st % NS) * 16384
        hi = slot >= 65536
        slot &= 0xffff
        for kk in range(4):
            f = FS[st & 1] + 8 * kk
            wv = 24 if hi else 16
            xv = (25 if hi else 12) + kk
            a(f"ds_read_b64_tr_b16 v[{f}:{f+1}], v{wv} offset:{slot+kk*2048}")
            a(f"ds_read_b64_tr_b16 v[{f+2}:{f+3}], v{wv} offset:{slot+kk*2048+512}")
            a(f"ds_read_b128 v[{f+4}:{f+7}], v{xv} offset:{slot}")
    a("s_barrier")
    ts()
    rd(0)
    for st in range(NST):
        if st in (8, 16): ts()
        a("s_waitcnt lgkmcnt(0)")
        a("s_barrier")
        if st + 1 < NST:
            rd(st + 1)
        for kk in range(4):
            f = FS[st & 1] + 8 * kk
            c = "0" if (st == 0 and kk == 0) else f"v[{ACC}:{ACC+15}]"
            if k3:
                a(f"v_mfma_f32_32x32x16_bf16 v[{ACC}:{ACC+15}], v[{f}:{f+3}], v[{f+4}:{f+7}], {c}")
            else:
                a(f"v_mfma_f32_32x32x16_bf16 v[{ACC}:{ACC+15}], v[{f+4}:{f+7}], v[{f}:{f+3}], {c}")
    ts()
    a("v_and_b32 v10, 31, v2")
    if k3:
        for g in range(4):
            a(f"buffer_load_dwordx2 v[{32+2*g}:{33+2*g}], v19, s[20:23], s46 offen offset:{16*g}")
        a("s_lshl_b32 s47, s44, 5")
        a("v_add_u32 v20, s47, v10")
        a("v_bfe_u32 v21, v20, 1, 3")
        a("s_lshl_b32 s47, s45, 2")
        a("v_xor_b32 v21, s47, v21")
        a("v_lshlrev_b32 v20, 7, v20")
        a("v_lshl_add_u32 v20, v21, 4, v20")
        a("v_lshl_add_u32 v20, v11, 3, v20")
        a("s_mul_i32 s47, s36, 28")
        a("s_add_u32 s47, s47, s35")
        a("s_lshl_b32 s47, s47, 13")
        a(f"s_add_u32 s47, s47, {WS_U}")
        a("s_waitcnt vmcnt(0)")
        a("s_nop 7")
        for g in range(4):
            b = ACC + 4 * g
            a(f"v_cvt_pk_bf16_f32 v40, v{b}, v{b+1}")
            a(f"v_cvt_pk_bf16_f32 v41, v{b+2}, v{b+3}")
            a("v_lshlrev_b32 v42, 16, v40")
            a("v_and_b32 v43, 0xffff0000, v40")
            a("v_lshlrev_b32 v44, 16, v41")
            a("v_and_b32 v45, 0xffff0000, v41")
            a(f"v_lshlrev_b32 v46, 16, v{32+2*g}")
            a(f"v_and_b32 v47, 0xffff0000, v{32+2*g}")
            a(f"v_lshlrev_b32 v48, 16, v{33+2*g}")
            a(f"v_and_b32 v49, 0xffff0000, v{33+2*g}")
            for i in range(4):
                a(f"v_add_f32 v{42+i}, v{42+i}, v{46+i}")
            a("v_cvt_pk_bf16_f32 v40, v42, v43")
            a("v_cvt_pk_bf16_f32 v41, v44, v45")
            a("v_lshlrev_b32 v42, 16, v40")
            a("v_and_b32 v43, 0xffff0000, v40")
            a("v_lshlrev_b32 v44, 16, v41")
            a("v_and_b32 v45, 0xffff0000, v41")
            for i in range(4):
                a(f"v_mul_f32 v{46+i}, v{42+i}, v{42+i}")
            for i in range(4):
                a(f"v_mov_b32 v{50+i}, 0x40135761")
                a(f"v_fmac_f32 v{50+i}, 0x3dd2d3e8, v{46+i}")
            for i in range(4):
                a(f"v_mul_f32 v{50+i}, v{50+i}, v{42+i}")
            for i in range(4):
                a(f"v_exp_f32 v{50+i}, -v{50+i}")
            a("s_nop 0")
            for i in range(4):
                a(f"v_add_f32 v{50+i}, 1.0, v{50+i}")
            for i in range(4):
                a(f"v_rcp_f32 v{50+i}, v{50+i}")
            a("s_nop 0")
            for i in range(4):
                a(f"v_mul_f32 v{42+i}, v{42+i}, v{50+i}")
            a("v_cvt_pk_bf16_f32 v54, v42, v43")
            a("v_cvt_pk_bf16_f32 v55, v44, v45")
            a(f"v_xor_b32 v21, {16*g}, v20")
            a(f"buffer_store_dwordx2 v[54:55], v21, s[28:31], s47 offen")
            a("s_nop 1")
    else:
        a(f"v_mul_u32_u24 v20, 896, v10")
        a("v_lshl_add_u32 v20, v11, 3, v20")
        a("s_lshl_b32 s46, s35, 1")
        a("s_add_u32 s46, s46, s45")
        a("s_mul_i32 s47, s46, 28672")
        a("s_lshl_b32 s48, s36, 7")
        a("s_add_u32 s47, s47, s48")
        a("s_lshl_b32 s48, s44, 6")
        a("s_add_u32 s47, s47, s48")
        a(f"s_add_u32 s48, s47, {WS_H}")
        for g in range(4):
            a(f"buffer_load_dwordx2 v[{32+2*g}:{33+2*g}], v20, s[28:31], s48 offen offset:{16*g}")
        a("v_lshlrev_b32 v21, 1, v10")
        a("s_lshl_b32 s46, s46, 6")
        a("buffer_load_ushort v22, v21, s[20:23], s46 offen")
        a("s_waitcnt vmcnt(0)")
        a("v_lshlrev_b32 v22, 16, v22")
        a("s_nop 7")
        for g in range(4):
            b = ACC + 4 * g
            a(f"v_cvt_pk_bf16_f32 v40, v{b}, v{b+1}")
            a(f"v_cvt_pk_bf16_f32 v41, v{b+2}, v{b+3}")
            a("v_lshlrev_b32 v42, 16, v40")
            a("v_and_b32 v43, 0xffff0000, v40")
            a("v_lshlrev_b32 v44, 16, v41")
            a("v_and_b32 v45, 0xffff0000, v41")
            for i in range(4):
                a(f"v_add_f32 v{42+i}, v{42+i}, v22")
            a("v_cvt_pk_bf16_f32 v40, v42, v43")
            a("v_cvt_pk_bf16_f32 v41, v44, v45")
            a("v_lshlrev_b32 v42, 16, v40")
            a("v_and_b32 v43, 0xffff0000, v40")
            a("v_lshlrev_b32 v44, 16, v41")
            a("v_and_b32 v45, 0xffff0000, v41")
            a(f"v_lshlrev_b32 v46, 16, v{32+2*g}")
            a(f"v_and_b32 v47, 0xffff0000, v{32+2*g}")
            a(f"v_lshlrev_b32 v48, 16, v{33+2*g}")
            a(f"v_and_b32 v49, 0xffff0000, v{33+2*g}")
            for i in range(4):
                a(f"v_add_f32 v{42+i}, v{42+i}, v{46+i}")
            a("v_cvt_pk_bf16_f32 v54, v42, v43")
            a("v_cvt_pk_bf16_f32 v55, v44, v45")
            a(f"buffer_store_dwordx2 v[54:55], v20, s[24:27], s47 offen offset:{16*g}")
            a("s_nop 1")
    ts()
    a.label(f"{L}_DONE")
    a("s_endpgm")
    kernel_desc(a, name, 160)
    return name, (224, 1, 1), (512, 1, 1), LDS

def gen_k3(a): return gen_gemm(a, 3)
def gen_k4(a): return gen_gemm(a, 4)
```

```python
from gen import *
import os

WS_WOF = 9 << 20

def gen_k2(a):
    name = "k2_attn_kernel"
    kernel_begin(a, name)
    LDS = 163840
    WOB = 65536
    MISC = 151552
    THR = float(os.environ.get("THR", "8.0"))
    import struct
    thr_bits = struct.unpack("<I", struct.pack("<f", THR))[0]
    a("s_cmp_ge_u32 s2, 256")
    a("s_cbranch_scc1 K2_DONE")
    a("s_load_dwordx2 s[4:5], s[0:1], 0")
    a("s_load_dwordx2 s[12:13], s[0:1], 96")
    a("s_load_dwordx2 s[6:7], s[0:1], 48")
    a("s_load_dwordx2 s[8:9], s[0:1], 64")
    a("v_lshrrev_b32 v1, 6, v0")
    a("v_and_b32 v2, 63, v0")
    a("s_nop 0")
    a("v_readfirstlane_b32 s32, v1")
    a("s_waitcnt lgkmcnt(0)")
    a("s_and_b32 s33, s32, 3")
    a("s_lshr_b32 s34, s32, 2")
    srd(a, 16, 4, 2048 * 896)
    srd(a, 28, 12, WS_SIZE)
    TS = os.environ.get("TS")
    tsn = [0]
    if TS:
        a("s_load_dwordx2 s[60:61], s[0:1], 88")
        a("s_waitcnt lgkmcnt(0)")
        srd(a, 64, 60, 256)
    def ts():
        if not TS: return
        i = tsn[0]; tsn[0] += 1
        a("s_memtime s[70:71]")
        a("s_waitcnt lgkmcnt(0)")
        a("v_mov_b32 v250, s70")
        a("s_cmp_eq_u32 s2, %s" % TS)
        a(f"s_cbranch_scc0 K2_TS{i}")
        a("s_cmp_eq_u32 s32, 0")
        a(f"s_cbranch_scc0 K2_TS{i}")
        a(f"v_mov_b32 v251, {4*i}")
        a("buffer_store_dword v250, v251, s[64:67], 0 offen")
        a.label(f"K2_TS{i}")
    ts()
    Q = 16; S = [24, 40]; P = 56; O = 64; KB = [80, 88]; VB = 96; WR = 104
    TM = 216
    a("v_lshlrev_b32 v6, 4, v2")
    a("s_lshl_b32 s38, s34, 16")
    a("s_lshl_b32 s39, s33, 10")
    a("s_add_u32 s38, s38, s39")
    a("s_lshl_b32 s40, s34, 15")
    a("s_add_u32 s39, s39, s40")
    def kv_items(c):
        sl = (c & 3) * 8192
        its = []
        for (wsb, lo) in ((WS_K, 0), (WS_V, 4096)):
            its.append([f"s_add_u32 s40, s39, {sl+lo}", f"s_add_u32 s41, s38, {wsb+c*4096}", "s_mov_b32 m0, s40", "s_nop 0",
                        "buffer_load_dwordx4 v6, s[28:31], s41 offen lds"])
        return its
    def kvdma(c):
        for it in kv_items(c):
            for l in it: a(l)
    kvdma(0)
    kvdma(1)
    a("v_and_b32 v3, 7, v2")
    a("v_lshlrev_b32 v3, 10, v3")
    a("v_bfe_u32 v4, v2, 3, 2")
    a("v_lshl_add_u32 v3, v4, 6, v3")
    a("v_lshrrev_b32 v5, 5, v2")
    a("v_lshl_add_u32 v3, v5, 4, v3")
    a("s_lshl_b32 s35, s2, 13")
    a("s_lshl_b32 s36, s33, 8")
    a("s_add_u32 s35, s35, s36")
    a(f"buffer_load_dwordx4 v[{Q}:{Q+3}], v3, s[28:31], s35 offen")
    a(f"buffer_load_dwordx4 v[{Q+4}:{Q+7}], v3, s[28:31], s35 offen offset:32")
    kvdma(2)
    a("s_lshl_b32 s40, s34, 15")
    a("v_add_u32 v7, s40, v6")
    a("s_lshl_b32 s44, s32, 12")
    a(f"s_add_u32 s44, s44, {WS_WOF}")
    a("s_lshl_b32 s45, s32, 12")
    a(f"s_add_u32 s45, s45, {WOB}")
    srd(a, 20, 6, 2048 * 3584)
    srd(a, 24, 8, 1792 * 4096)
    a("s_and_b32 s50, s2, 7")
    a("s_lshr_b32 s51, s2, 3")
    a("v_lshrrev_b32 v8, 3, v2")
    a("v_and_b32 v9, 7, v2")
    a("s_movk_i32 s40, 3584")
    a("v_mul_lo_u32 v10, v8, s40")
    a("v_lshl_add_u32 v10, v9, 4, v10")
    a("v_lshlrev_b32 v11, 12, v8")
    a("v_lshl_add_u32 v11, v9, 4, v11")
    a("s_lshl_b32 s50, s50, 7")
    a("s_mul_i32 s52, s51, %d" % (64 * 3584))
    a("s_add_u32 s52, s52, s50")
    a("s_mul_i32 s53, s51, %d" % (56 * 4096))
    a("s_add_u32 s53, s53, s50")
    a("s_mov_b32 s42, 0")
    a("s_mov_b32 s43, -1")
    a("s_mov_b32 s46, 0xff800000")
    a(f"v_mov_b32 v{TM}, 0")
    def woreg(ks):
        its = []
        for mt in range(4):
            r = WR + (ks * 4 + mt) * 4
            its.append([f"s_add_u32 s40, s44, {ks*28672+mt*1024}", f"buffer_load_dwordx4 v[{r}:{r+3}], v6, s[28:31], s40 offen"])
        return its
    def wolds(ks):
        its = []
        for mt in range(4):
            its.append([f"s_add_u32 s40, s45, {(ks-7)*28672+mt*1024}", f"s_add_u32 s41, s44, {ks*28672+mt*1024}", "s_mov_b32 m0, s40", "s_nop 0",
                        "buffer_load_dwordx4 v6, s[28:31], s41 offen lds"])
        return its
    def pf7_items(c):
        its = []
        for n, (m, j, r8) in enumerate(PF7[c]):
            if m == 0:
                its.append([f"s_add_u32 s40, s52, {j*1024 + r8*8*3584}", f"buffer_load_dwordx4 v[{104+4*n}:{107+4*n}], v10, s[20:23], s40 offen"])
            else:
                its.append([f"s_add_u32 s40, s53, {j*1024 + r8*8*4096}", f"buffer_load_dwordx4 v[{104+4*n}:{107+4*n}], v11, s[24:27], s40 offen"])
        return its
    uid = [0]
    queue = []
    def fill_queue(c):
        if c + 3 < 16:
            for it in kv_items(c + 3):
                queue.append((it, None, None))
        r, l = PF[c]
        its = []
        for ks in r: its += woreg(ks)
        for ks in l: its += wolds(ks)
        i7 = pf7_items(c)
        for i in range(max(len(its), len(i7))):
            queue.append((None, its[i] if i < len(its) else None, i7[i] if i < len(i7) else None))
    def slot(n=1):
        for _ in range(n):
            if not queue: return
            cm, a06, a7 = queue.pop(0)
            if cm:
                for l in cm: a(l)
            else:
                u = uid[0]; uid[0] += 1
                a("s_cmp_ge_u32 s32, 7")
                a(f"s_cbranch_scc1 K2_Q7_{u}")
                if a06:
                    for l in a06: a(l)
                a(f"s_branch K2_QJ_{u}")
                a.label(f"K2_Q7_{u}")
                if a7:
                    for l in a7: a(l)
                a.label(f"K2_QJ_{u}")
    def rdK(t):
        kb = KB[t & 1]; c = t >> 1; tl = t & 1
        off = (c & 3) * 8192 + tl * 2048
        a(f"ds_read_b128 v[{kb}:{kb+3}], v7 offset:{off}")
        a(f"ds_read_b128 v[{kb+4}:{kb+7}], v7 offset:{off+1024}")
    def rdV(t):
        c = t >> 1; tl = t & 1
        off = (c & 3) * 8192 + 4096 + tl * 2048
        a(f"ds_read_b128 v[{VB}:{VB+3}], v7 offset:{off}")
        a(f"ds_read_b128 v[{VB+4}:{VB+7}], v7 offset:{off+1024}")
    def mmS(t):
        kb = KB[t & 1]; s = S[t & 1]
        a(f"v_mfma_f32_32x32x16_bf16 v[{s}:{s+15}], v[{kb}:{kb+3}], v[{Q}:{Q+3}], 0")
        a(f"v_mfma_f32_32x32x16_bf16 v[{s}:{s+15}], v[{kb+4}:{kb+7}], v[{Q+4}:{Q+7}], v[{s}:{s+15}]")
    rare = []
    a("s_waitcnt vmcnt(2)")
    a("s_barrier")
    rdK(0)
    rdK(1)
    a("s_waitcnt lgkmcnt(2)")
    mmS(0)
    for t in range(32):
        c = t >> 1; tl = t & 1
        if tl == 0:
            if c > 0:
                if c + 1 < 16:
                    n_after = (2 if c + 2 < 16 else 0) + pf_count(c - 1) + (pf_count(c - 2) if c >= 2 else 0)
                    n7 = (2 if c + 2 < 16 else 0) + len(PF7[c - 1]) + (len(PF7[c - 2]) if c >= 2 else 0)
                    a("s_cmp_ge_u32 s32, 7")
                    a(f"s_cbranch_scc1 K2_W7_{c}")
                    a(f"s_waitcnt vmcnt({n_after})")
                    a(f"s_branch K2_WJ_{c}")
                    a.label(f"K2_W7_{c}")
                    a(f"s_waitcnt vmcnt({n7})")
                    a.label(f"K2_WJ_{c}")
                a("s_barrier")
                if c in (4, 8): ts()
            assert not queue
            fill_queue(c)
            slot(1)
        rdV(t)
        has_next = t + 1 < 32
        if has_next:
            a("s_waitcnt lgkmcnt(2)")
            mmS(t + 1)
            if t + 2 < 32:
                rdK(t + 2)
        else:
            a("s_nop 7")
        last_in_chunk = not has_next
        nk = 2 if t + 2 < 32 else 0
        s = S[t & 1]
        a(f"v_max3_f32 v{TM+1}, v{s}, v{s+1}, v{s+2}")
        a(f"v_max3_f32 v{TM+2}, v{s+3}, v{s+4}, v{s+5}")
        a(f"v_max3_f32 v{TM+1}, v{TM+1}, v{s+6}, v{s+7}")
        a(f"v_max3_f32 v{TM+2}, v{TM+2}, v{s+8}, v{s+9}")
        a(f"v_max3_f32 v{TM+1}, v{TM+1}, v{s+10}, v{s+11}")
        a(f"v_max3_f32 v{TM+2}, v{TM+2}, v{s+12}, v{s+13}")
        a(f"v_max3_f32 v{TM+1}, v{TM+1}, v{s+14}, v{s+15}")
        a(f"v_max_f32 v{TM+1}, v{TM+1}, v{TM+2}")
        if not (os.environ.get("NOCHK") and t > 0):
            a(f"v_cmp_lt_f32 vcc, s46, v{TM+1}")
            a(f"s_cbranch_vccnz K2_RARE{t}")
        a.label(f"K2_BACK{t}")
        rare.append((t, not last_in_chunk))
        for i in range(16):
            a(f"v_exp_f32 v{s+i}, v{s+i}")
            if i in (3, 9, 15): slot(1)
        for i in range(8):
            a(f"v_cvt_pk_bf16_f32 v{P+i}, v{s+2*i}, v{s+2*i+1}")
        if tl == 1: slot(8)
        a(f"s_waitcnt lgkmcnt({nk})")
        cc = "0" if t == 0 else f"v[{O}:{O+15}]"
        a(f"v_mfma_f32_32x32x16_bf16 v[{O}:{O+15}], v[{VB}:{VB+3}], v[{P}:{P+3}], {cc}")
        a(f"v_mfma_f32_32x32x16_bf16 v[{O}:{O+15}], v[{VB+4}:{VB+7}], v[{P+4}:{P+7}], v[{O}:{O+15}]")
    ts()
    LATE = list(range(24, 64)) + list(range(80, 104))
    OP = 0; OPP = 144
    OA = 36864; OAP = 912
    HT = 0; HTP = 1808
    ST = 16384
    MXB = MISC
    a("s_cmp_ge_u32 s32, 7")
    a("s_cbranch_scc1 K2_NOLATE")
    for ks in range(10, 14):
        for mt in range(4):
            r = LATE[((ks - 10) * 4 + mt) * 4]
            a(f"s_add_u32 s40, s44, {ks*28672+mt*1024}")
            a(f"buffer_load_dwordx4 v[{r}:{r+3}], v6, s[28:31], s40 offen")
    a.label("K2_NOLATE")
    a("s_barrier")
    a("v_and_b32 v10, 15, v2")
    a("v_lshrrev_b32 v11, 4, v2")
    a("s_movk_i32 s40, 896")
    a("v_mul_lo_u32 v12, v10, s40")
    a("v_lshl_add_u32 v12, v11, 3, v12")
    a("s_mul_i32 s40, s2, 7168")
    a("s_lshl_b32 s41, s32, 7")
    a("s_add_u32 s40, s40, s41")
    a("v_cmp_gt_u32 vcc, 8, v10")
    a("v_mov_b32 v13, 0x7fffffff")
    a("s_nop 0")
    a("v_cndmask_b32 v12, v13, v12, vcc")
    for mt in range(4):
        a(f"buffer_load_dwordx2 v[{232+2*mt}:{233+2*mt}], v12, s[16:19], s40 offen offset:{32*mt}")
    a("v_and_b32 v14, 31, v2")
    a(f"v_mul_u32_u24 v14, {OPP}, v14")
    a("v_lshl_add_u32 v14, v5, 4, v14")
    a(f"s_mul_i32 s40, s32, {32*OPP}")
    a("v_add_u32 v14, s40, v14")
    for g4 in range(4):
        a(f"ds_write_b128 v14, v[{O+4*g4}:{O+4*g4+3}] offset:{OP+32*g4}")
    a("v_lshlrev_b32 v9, 2, v2")
    a("s_lshl_b32 s40, s32, 8")
    a(f"s_add_u32 s40, s40, {MXB}")
    a("v_add_u32 v9, s40, v9")
    a(f"ds_write_b32 v9, v{TM}")
    a("s_waitcnt lgkmcnt(0)")
    a("s_barrier")
    a("v_lshrrev_b32 v14, 2, v0")
    a("v_and_b32 v15, 3, v0")
    a(f"v_mul_u32_u24 v8, {OPP}, v14")
    a("v_lshl_add_u32 v9, v15, 5, v8")
    M0 = 216
    a(f"ds_read_b128 v[64:67], v9 offset:{OP}")
    a(f"ds_read_b128 v[68:71], v9 offset:{OP+16}")
    a(f"ds_read_b128 v[72:75], v9 offset:{OP+128*OPP}")
    a(f"ds_read_b128 v[76:79], v9 offset:{OP+128*OPP+16}")
    a(f"ds_read_b32 v217, v8 offset:{OP+112}")
    a(f"ds_read_b32 v218, v8 offset:{OP+128*OPP+112}")
    a("v_lshrrev_b32 v13, 5, v14")
    a("v_lshlrev_b32 v13, 8, v13")
    a("v_and_b32 v8, 31, v14")
    a("v_lshl_add_u32 v13, v8, 2, v13")
    a(f"v_add_u32 v13, {MXB}, v13")
    a(f"ds_read_b32 v219, v13")
    a(f"ds_read_b32 v220, v13 offset:1024")
    a("s_waitcnt lgkmcnt(0)")
    a("v_max_f32 v221, v219, v220")
    a("v_sub_f32 v219, v219, v221")
    a("v_sub_f32 v220, v220, v221")
    a("v_exp_f32 v219, v219")
    a("v_exp_f32 v220, v220")
    a("s_nop 0")
    a("v_mul_f32 v217, v217, v219")
    a("v_fmac_f32 v217, v218, v220")
    a("v_rcp_f32 v217, v217")
    a("s_nop 0")
    a("v_mul_f32 v219, v219, v217")
    a("v_mul_f32 v220, v220, v217")
    for i in range(8):
        a(f"v_mul_f32 v{64+i}, v{64+i}, v219")
    for i in range(8):
        a(f"v_fmac_f32 v{64+i}, v{72+i}, v220")
    for i in range(4):
        a(f"v_cvt_pk_bf16_f32 v{64+i}, v{64+2*i}, v{65+2*i}")
    a("v_and_b32 v8, 7, v14")
    a(f"v_mul_u32_u24 v8, {OAP}, v8")
    a("v_lshrrev_b32 v9, 3, v14")
    a("v_mul_u32_u24 v9, 56, v9")
    a("v_add_u32 v8, v8, v9")
    a("v_lshl_add_u32 v8, v15, 4, v8")
    a(f"ds_write_b64 v8, v[64:65] offset:{OA}")
    a("v_cmp_gt_u32 vcc, 3, v15")
    a("s_and_saveexec_b64 s[46:47], vcc")
    a(f"ds_write_b64 v8, v[66:67] offset:{OA+8}")
    a("s_mov_b64 exec, s[46:47]")
    a("s_waitcnt vmcnt(0) lgkmcnt(0)")
    a("s_barrier")
    ts()
    a("s_cmp_ge_u32 s32, 7")
    a("s_cbranch_scc1 K2_HS")
    a(f"v_mul_u32_u24 v8, {OAP}, v10")
    a("v_lshl_add_u32 v8, v11, 4, v8")
    a("v_add_u32 v9, s45, v6")
    ACC = 64
    BF = [216, 220]
    AF = 224
    def rdB(ks):
        b = BF[ks & 1]
        a(f"ds_read_b128 v[{b}:{b+3}], v8 offset:{OA+ks*64}")
    rdB(0)
    for ks in range(14):
        nl = 0
        if ks + 1 < 14:
            rdB(ks + 1); nl += 1
        b = BF[ks & 1]
        for mt in range(4):
            c = "0" if ks == 0 else f"v[{ACC+4*mt}:{ACC+4*mt+3}]"
            if ks < 7:
                r = WR + (ks * 4 + mt) * 4
                if mt == 0: a(f"s_waitcnt lgkmcnt({nl})")
            elif ks < 10:
                r = AF + 4 * (mt & 1)
                a(f"ds_read_b128 v[{r}:{r+3}], v9 offset:{(ks-7)*28672+mt*1024}")
                a("s_waitcnt lgkmcnt(0)")
            else:
                r = LATE[((ks - 10) * 4 + mt) * 4]
                if mt == 0: a(f"s_waitcnt lgkmcnt({nl})")
            a(f"v_mfma_f32_16x16x32_bf16 v[{ACC+4*mt}:{ACC+4*mt+3}], v[{r}:{r+3}], v[{b}:{b+3}], {c}")
    a("s_nop 15")
    ts()
    for mt in range(4):
        b = ACC + 4 * mt
        a(f"v_cvt_pk_bf16_f32 v24, v{b}, v{b+1}")
        a(f"v_cvt_pk_bf16_f32 v25, v{b+2}, v{b+3}")
        a(f"v_lshlrev_b32 v26, 16, v24")
        a(f"v_and_b32 v27, 0xffff0000, v24")
        a(f"v_lshlrev_b32 v28, 16, v25")
        a(f"v_and_b32 v29, 0xffff0000, v25")
        xr = 232 + 2 * mt
        a(f"v_lshlrev_b32 v30, 16, v{xr}")
        a(f"v_and_b32 v31, 0xffff0000, v{xr}")
        a(f"v_lshlrev_b32 v32, 16, v{xr+1}")
        a(f"v_and_b32 v33, 0xffff0000, v{xr+1}")
        for i in range(4):
            a(f"v_add_f32 v{26+i}, v{26+i}, v{30+i}")
        a(f"v_cvt_pk_bf16_f32 v24, v26, v27")
        a(f"v_cvt_pk_bf16_f32 v25, v28, v29")
        a(f"v_lshlrev_b32 v{b}, 16, v24")
        a(f"v_and_b32 v{b+1}, 0xffff0000, v24")
        a(f"v_lshlrev_b32 v{b+2}, 16, v25")
        a(f"v_and_b32 v{b+3}, 0xffff0000, v25")
    a(f"v_mul_u32_u24 v24, {HTP}, v10")
    a("v_lshl_add_u32 v24, v11, 4, v24")
    a("s_lshl_b32 s40, s32, 8")
    a("v_add_u32 v24, s40, v24")
    a("v_cmp_gt_u32 vcc, 8, v10")
    a("s_and_saveexec_b64 s[46:47], vcc")
    for mt in range(4):
        a(f"ds_write_b128 v24, v[{ACC+4*mt}:{ACC+4*mt+3}] offset:{HT+64*mt}")
    a("s_mov_b64 exec, s[46:47]")
    a.label("K2_HS")
    a("s_waitcnt lgkmcnt(0)")
    a("s_barrier")
    a("v_lshlrev_b32 v24, 5, v2")
    a(f"s_mul_i32 s40, s32, {HTP}")
    a("v_add_u32 v24, s40, v24")
    for i in range(8):
        a(f"v_mov_b32 v{32+i}, 0")
    a("v_cmp_gt_u32 vcc, 56, v2")
    a("s_and_saveexec_b64 s[46:47], vcc")
    a(f"ds_read_b128 v[32:35], v24 offset:{HT}")
    a(f"ds_read_b128 v[36:39], v24 offset:{HT+16}")
    a("s_waitcnt lgkmcnt(0)")
    a("s_mov_b64 exec, s[46:47]")
    a("v_add_f32 v40, v32, v33")
    for i in range(2, 8):
        a(f"v_add_f32 v40, v40, v{32+i}")
    def wave_sum(v, s):
        for sh in (1, 2, 4, 8):
            a("s_nop 1")
            a(f"v_mov_b32 v41, 0")
            a("s_nop 1")
            a(f"v_mov_b32 v41, v{v} row_shr:{sh} row_mask:0xf bank_mask:0xf")
            a("s_nop 1")
            a(f"v_add_f32 v{v}, v{v}, v41")
        a("s_nop 1")
        a(f"v_readlane_b32 s{s}, v{v}, 15")
        a(f"v_readlane_b32 s{s+1}, v{v}, 31")
        a(f"v_readlane_b32 s{s+2}, v{v}, 47")
        a(f"v_readlane_b32 s{s+3}, v{v}, 63")
        a("s_nop 3")
        a(f"v_mov_b32 v41, s{s}")
        a(f"v_add_f32 v41, s{s+1}, v41")
        a(f"v_add_f32 v41, s{s+2}, v41")
        a(f"v_add_f32 v41, s{s+3}, v41")
    wave_sum(40, 48)
    a("v_mul_f32 v42, 0x3b124925, v41")
    a("v_mov_b32 v40, 0")
    a("s_and_saveexec_b64 s[46:47], vcc")
    for i in range(8):
        a(f"v_sub_f32 v{44+i}, v{32+i}, v42")
    a("v_mul_f32 v40, v44, v44")
    for i in range(1, 8):
        a(f"v_fmac_f32 v40, v{44+i}, v{44+i}")
    for i in range(4):
        a(f"v_cvt_pk_bf16_f32 v{52+i}, v{32+2*i}, v{33+2*i}")
    a("v_lshlrev_b32 v25, 4, v2")
    a("s_lshl_b32 s40, s2, 3")
    a("s_add_u32 s40, s40, s32")
    a("s_mul_i32 s40, s40, 896")
    a(f"s_add_u32 s40, s40, {WS_H}")
    a("buffer_store_dwordx4 v[52:55], v25, s[28:31], s40 offen")
    a("s_mov_b64 exec, s[46:47]")
    wave_sum(40, 48)
    a("v_mov_b32 v43, 0x3727c5ac")
    a("v_fmac_f32 v43, 0x3b124925, v41")
    a("v_rsq_f32 v43, v43")
    a("s_lshl_b32 s40, s32, 3")
    a(f"s_add_u32 s40, s40, {ST}")
    a("v_mov_b32 v25, s40")
    a("v_cmp_eq_u32 vcc, 0, v2")
    a("s_and_saveexec_b64 s[46:47], vcc")
    a("ds_write_b64 v25, v[42:43]")
    a("s_mov_b64 exec, s[46:47]")
    a("s_waitcnt lgkmcnt(0)")
    a("s_barrier")
    a("v_cmp_gt_u32 vcc, 448, v0")
    a("s_and_saveexec_b64 s[46:47], vcc")
    a("s_cbranch_execz K2_DONE")
    a("v_lshlrev_b32 v24, 2, v0")
    for t in range(8):
        a(f"ds_read_b32 v{32+t}, v24 offset:{HT+t*HTP}")
    a(f"v_mov_b32 v25, {ST}")
    for t in range(4):
        a(f"ds_read_b128 v[{48+4*t}:{51+4*t}], v25 offset:{16*t}")
    a("v_lshrrev_b32 v26, 6, v0")
    a("v_and_b32 v27, 63, v0")
    a("v_lshlrev_b32 v26, 18, v26")
    a("v_lshl_add_u32 v26, v27, 7, v26")
    a("v_bfe_u32 v27, v27, 1, 3")
    a("s_and_b32 s40, s2, 7")
    a("v_xor_b32 v27, s40, v27")
    a("v_lshl_add_u32 v26, v27, 4, v26")
    a("s_lshr_b32 s40, s2, 3")
    a("s_lshl_b32 s40, s40, 13")
    a(f"s_add_u32 s40, s40, {WS_HNT}")
    a("s_waitcnt lgkmcnt(0)")
    for t in range(8):
        a(f"v_sub_f32 v{32+t}, v{32+t}, v{48+2*t}")
        a(f"v_mul_f32 v{32+t}, v{32+t}, v{49+2*t}")
    for i in range(4):
        a(f"v_cvt_pk_bf16_f32 v{40+i}, v{32+2*i}, v{33+2*i}")
    a("buffer_store_dwordx4 v[40:43], v26, s[28:31], s40 offen")
    ts()
    a.label("K2_DONE")
    a("s_endpgm")
    for t, has_next in rare:
        s = S[t & 1]; sn = S[(t + 1) & 1]
        a.label(f"K2_RARE{t}")
        a(f"v_xor_b32 v{TM+2}, 32, v2")
        a(f"v_lshlrev_b32 v{TM+2}, 2, v{TM+2}")
        a(f"ds_bpermute_b32 v{TM+3}, v{TM+2}, v{TM+1}")
        a("s_waitcnt lgkmcnt(0)")
        a(f"v_max_f32 v{TM+1}, v{TM+1}, v{TM+3}")
        a(f"v_cmp_lt_f32 vcc, s46, v{TM+1}")
        a("s_nop 1")
        a(f"v_cndmask_b32 v{TM+1}, 0, v{TM+1}, vcc")
        a(f"v_add_f32 v{TM+1}, v{TM}, v{TM+1}")
        a(f"v_sub_f32 v{TM+2}, 0, v{TM+1}")
        a(f"v_cvt_pk_bf16_f32 v{TM+3}, v{TM+2}, v{TM+2}")
        a(f"v_lshlrev_b32 v{TM+4}, 16, v{TM+3}")
        a(f"v_sub_f32 v{TM+5}, v{TM+2}, v{TM+4}")
        a(f"v_cvt_pk_bf16_f32 v{TM+5}, v{TM+5}, v{TM+5}")
        a(f"v_lshlrev_b32 v{TM+6}, 16, v{TM+5}")
        a(f"v_add_f32 v{TM+4}, v{TM+4}, v{TM+6}")
        a(f"v_and_b32 v{TM+3}, 0xffff, v{TM+3}")
        a(f"v_lshl_or_b32 v{TM+3}, v{TM+5}, 16, v{TM+3}")
        a(f"v_cndmask_b32 v{Q+6}, v{Q+6}, v{TM+3}, s[42:43]")
        a(f"v_add_f32 v{TM+5}, v{TM}, v{TM+4}")
        a(f"v_sub_f32 v{TM}, 0, v{TM+4}")
        for i in range(16):
            a(f"v_add_f32 v{s+i}, v{s+i}, v{TM+5}")
        if has_next:
            a("s_nop 7")
            for i in range(16):
                a(f"v_add_f32 v{sn+i}, v{sn+i}, v{TM+5}")
        if t > 0:
            a(f"v_exp_f32 v{TM+5}, v{TM+5}")
            a("s_nop 7")
            a("s_nop 7")
            for i in range(16):
                a(f"v_mul_f32 v{O+i}, v{O+i}, v{TM+5}")
        a(f"s_mov_b32 s46, 0x{thr_bits:08x}")
        a("s_nop 1")
        a(f"s_branch K2_BACK{t}")
    kernel_desc(a, name, 256)
    return name, (256, 1, 1), (512, 1, 1), LDS

PF = {c: ([], []) for c in range(16)}
for _i, _c in enumerate((0, 2, 4, 6, 8, 10, 12)): PF[_c] = ([_i], [])
for _i, _c in enumerate((1, 3, 5)): PF[_c] = ([], [7 + _i])
if os.environ.get('NOPF'): PF = {c: ([], []) for c in range(16)}
def pf_count(c):
    r, l = PF[c]
    return 4 * (len(r) + len(l))
_all = [(0, j, r8) for j in range(4) for r8 in range(8)] + [(1, j, r8) for j in range(4) for r8 in range(7)]
PF7 = {c: _all[c*5:(c+1)*5] for c in range(16)}
if os.environ.get('NOPF7'): PF7 = {c: [] for c in range(16)}
```

```python
import sys

NAME = "sequential_preLN__grouped_kv_mqa__mixer_token_mlp__prompt"

HEADER = """; Kernarg layout for this problem (104 bytes, ptrs only, base s[0:1]):
"""

WS_Q = 0
WS_K = 2 << 20
WS_V = WS_K + (128 << 10)
WS_H = 3 << 20
WS_HNT = 5 << 20
WS_U = 7 << 20
WS_WOF = 9 << 20
WS_SIZE = 268435456


class Asm:
    def __init__(self):
        self.lines = []
    def __call__(self, s):
        self.lines.append("    " + s)
    def label(self, s):
        self.lines.append(s + ":")
    def raw(self, s):
        self.lines.append(s)
    def text(self):
        return "\n".join(self.lines) + "\n"


def kernel_begin(a, name):
    a.raw(".text")
    a.raw(f".globl {name}")
    a.raw(".p2align 8")
    a.raw(f".type {name},@function")
    a.label(name)


def kernel_desc(a, name, vgpr, sgpr=102, accum=None):
    if accum is None:
        accum = (vgpr + 3) // 4 * 4
    a.raw('.section .rodata,"a"')
    a.raw(".p2align 6")
    a.raw(f".amdhsa_kernel {name}")
    a.raw(f"  .amdhsa_next_free_vgpr {vgpr}")
    a.raw(f"  .amdhsa_next_free_sgpr {sgpr}")
    a.raw(f"  .amdhsa_accum_offset {accum}")
    a.raw("  .amdhsa_group_segment_fixed_size 0")
    a.raw("  .amdhsa_kernarg_size 104")
    a.raw("  .amdhsa_user_sgpr_count 2")
    a.raw("  .amdhsa_user_sgpr_kernarg_segment_ptr 1")
    a.raw("  .amdhsa_system_sgpr_workgroup_id_x 1")
    a.raw(".end_amdhsa_kernel")


def srd(a, d, b, nbytes):
    a(f"s_mov_b32 s{d}, s{b}")
    a(f"s_and_b32 s{d+1}, s{b+1}, 0xffff")
    a(f"s_mov_b32 s{d+2}, 0x{nbytes:x}")
    a(f"s_mov_b32 s{d+3}, 0x00020000")


def gen_k1(a):
    name = "k1_qkv_kernel"
    kernel_begin(a, name)
    XN = 0
    XN_PITCH = 912
    WT = 29184
    KV = WT + 102400
    LDS = KV + 28672 + 256
    a("s_cmp_ge_u32 s2, 256")
    a("s_cbranch_scc1 K1_DONE")
    a("s_load_dwordx4 s[4:7], s[0:1], 0")
    a("s_load_dwordx4 s[8:11], s[0:1], 16")
    a("s_load_dwordx2 s[12:13], s[0:1], 96")
    a("s_lshr_b32 s14, s2, 2")
    a("s_and_b32 s15, s2, 3")
    a("v_lshrrev_b32 v1, 6, v0")
    a("v_and_b32 v2, 63, v0")
    a("s_nop 0")
    a("v_readfirstlane_b32 s32, v1")
    a("s_waitcnt lgkmcnt(0)")
    srd(a, 16, 4, 2048 * 896)
    srd(a, 20, 6, 448 * 896)
    a("s_cmp_eq_u32 s15, 0")
    a("s_cselect_b32 s24, s8, s10")
    a("s_cselect_b32 s25, s9, s11")
    a("s_and_b32 s25, s25, 0xffff")
    a("s_mov_b32 s26, 25088")
    a("s_mov_b32 s27, 0x00020000")
    srd(a, 28, 12, WS_SIZE)
    import os
    TS = os.environ.get("TS")
    tsn = [0]
    if TS:
        a("s_load_dwordx2 s[70:71], s[0:1], 88")
        a("s_waitcnt lgkmcnt(0)")
        srd(a, 72, 70, 256)
    def ts():
        if not TS: return
        i = tsn[0]; tsn[0] += 1
        a("s_memtime s[76:77]")
        a("s_waitcnt lgkmcnt(0)")
        a("v_mov_b32 v120, s76")
        a("s_cmp_eq_u32 s2, %s" % TS)
        a(f"s_cbranch_scc0 K1_TS{i}")
        a("s_cmp_eq_u32 s32, 0")
        a(f"s_cbranch_scc0 K1_TS{i}")
        a(f"v_mov_b32 v121, {4*i}")
        a("buffer_store_dword v120, v121, s[72:75], 0 offen")
        a.label(f"K1_TS{i}")
    ts()
    a("s_cmp_ge_u32 s32, 4")
    a("s_cbranch_scc1 K1_SKIPX")
    a("v_lshrrev_b32 v3, 3, v0")
    a("v_and_b32 v4, 7, v0")
    a("s_lshl_b32 s33, s14, 5")
    a("v_add_u32 v5, s33, v3")
    a("s_movk_i32 s34, 896")
    a("v_mul_lo_u32 v5, v5, s34")
    a("v_lshl_add_u32 v5, v4, 4, v5")
    for i in range(7):
        a(f"buffer_load_dwordx4 v[{32+4*i}:{35+4*i}], v5, s[16:19], 0 offen offset:{128*i}")
    a.label("K1_SKIPX")
    a("s_cmp_lt_u32 s32, 4")
    a("s_cbranch_scc1 K1_SKIPKV")
    a("s_sub_u32 s39, s32, 4")
    a("s_lshl_b32 s35, s39, 6")
    a("v_add_u32 v6, s35, v2")
    a("s_mul_i32 s36, s15, 224")
    a("s_mov_b32 s37, 37450")
    a(f"s_lshl_b32 s38, s39, 10")
    a(f"s_add_u32 s38, s38, {WT}")
    for it in range(25):
        a("v_mul_u32_u24 v7, s37, v6")
        a("v_lshrrev_b32 v7, 19, v7")
        a("v_mul_u32_u24 v7, 672, v7")
        a("v_lshl_add_u32 v7, v6, 4, v7")
        a("s_mov_b32 m0, s38")
        a("s_add_u32 s38, s38, 4096")
        a("buffer_load_dwordx4 v7, s[20:23], s36 offen lds")
        if it != 24:
            a("v_add_u32 v6, 256, v6")
    a("s_cmp_ge_u32 s15, 2")
    a("s_cbranch_scc1 K1_SKIPKV")
    a("v_add_u32 v7, s35, v2")
    a("v_lshlrev_b32 v7, 4, v7")
    a("s_lshl_b32 s38, s39, 10")
    a(f"s_add_u32 s38, s38, {KV}")
    for it in range(7):
        a("s_mov_b32 m0, s38")
        a("s_add_u32 s38, s38, 4096")
        a(f"buffer_load_dwordx4 v7, s[24:27], 0 offen lds")
        if it != 6:
            a("v_add_u32 v7, 4096, v7")
    a.label("K1_SKIPKV")
    a("s_cmp_ge_u32 s32, 4")
    a("s_cbranch_scc1 K1_SKIPLN")
    a("s_waitcnt vmcnt(0)")
    ts()
    for i in range(28):
        a(f"v_lshlrev_b32 v{64+2*i}, 16, v{32+i}")
        a(f"v_and_b32 v{65+2*i}, 0xffff0000, v{32+i}")
    a("v_add_f32 v8, v64, v65")
    a("v_add_f32 v9, v66, v67")
    for i in range(2, 28):
        a(f"v_add_f32 v{8+(i&1)}, v{8+(i&1)}, v{64+2*i}")
        a(f"v_add_f32 v{8+(i&1)}, v{8+(i&1)}, v{65+2*i}")
    a("v_add_f32 v8, v8, v9")

    def red8(v):
        a("s_nop 1")
        a(f"v_add_f32 v{v}, v{v}, v{v} quad_perm:[1,0,3,2] row_mask:0xf bank_mask:0xf")
        a("s_nop 1")
        a(f"v_add_f32 v{v}, v{v}, v{v} quad_perm:[2,3,0,1] row_mask:0xf bank_mask:0xf")
        a("s_nop 1")
        a(f"v_add_f32 v{v}, v{v}, v{v} row_half_mirror row_mask:0xf bank_mask:0xf")
    red8(8)
    a("v_mul_f32 v8, 0x3b124925, v8")
    for i in range(56):
        a(f"v_sub_f32 v{64+i}, v{64+i}, v8")
    a("v_mul_f32 v9, v64, v64")
    a("v_mul_f32 v10, v65, v65")
    for i in range(2, 56):
        a(f"v_fmac_f32 v{9+(i&1)}, v{64+i}, v{64+i}")
    a("v_add_f32 v9, v9, v10")
    red8(9)
    a("v_mov_b32 v10, 0x3727c5ac")
    a("v_fmac_f32 v10, 0x3b124925, v9")
    a("v_rsq_f32 v10, v10")
    a("s_nop 0")
    for i in range(56):
        a(f"v_mul_f32 v{64+i}, v{64+i}, v10")
    for i in range(28):
        a(f"v_cvt_pk_bf16_f32 v{32+i}, v{64+2*i}, v{65+2*i}")
    a(f"v_mul_u32_u24 v11, {XN_PITCH}, v3")
    a("v_lshl_add_u32 v11, v4, 4, v11")
    for i in range(7):
        a(f"ds_write_b128 v11, v[{32+4*i}:{35+4*i}] offset:{XN+128*i}")
    a.label("K1_SKIPLN")
    ts()
    a("s_waitcnt vmcnt(0) lgkmcnt(0)")
    a("s_barrier")
    ts()
    a("v_and_b32 v12, 31, v2")
    a(f"v_mul_u32_u24 v12, {XN_PITCH}, v12")
    a("v_lshrrev_b32 v13, 5, v2")
    a("v_lshl_add_u32 v12, v13, 4, v12")
    a("v_bfe_u32 v14, v2, 2, 2")
    a("v_lshl_add_u32 v14, v13, 3, v14")
    a("v_bfe_u32 v15, v2, 4, 1")
    a("v_and_b32 v16, 3, v2")
    a("v_lshlrev_b32 v16, 3, v16")
    a("v_lshl_add_u32 v15, v15, 5, v16")
    a("s_cmp_ge_u32 s32, 5")
    a("s_cbranch_scc1 K1_DONE")
    a("s_cmp_ge_u32 s32, 4")
    a("s_cbranch_scc1 K1_KV")

    def mm_loop(pitch, base_v, swap):
        half = 14
        D = 4
        a(f"v_add_u32 v17, {half*16*pitch}, v{base_v}")
        def issue(k):
            wr = 80 + 8 * (k % (D + 1))
            b = base_v if k < half else 17
            kk = k if k < half else k - half
            a(f"ds_read_b64_tr_b16 v[{wr}:{wr+1}], v{b} offset:{kk*16*pitch}")
            a(f"ds_read_b64_tr_b16 v[{wr+2}:{wr+3}], v{b} offset:{kk*16*pitch+4*pitch}")
            a(f"ds_read_b128 v[{wr+4}:{wr+7}], v12 offset:{XN+k*32}")
        for k in range(D):
            issue(k)
        for k in range(28):
            if k + D < 28:
                issue(k + D)
            inflight = min(28, k + D + 1) - (k + 1)
            a(f"s_waitcnt lgkmcnt({3*inflight})")
            wr = 80 + 8 * (k % (D + 1))
            c = "0" if k == 0 else "v[64:79]"
            if not swap:
                a(f"v_mfma_f32_32x32x16_bf16 v[64:79], v[{wr}:{wr+3}], v[{wr+4}:{wr+7}], {c}")
            else:
                a(f"v_mfma_f32_32x32x16_bf16 v[64:79], v[{wr+4}:{wr+7}], v[{wr}:{wr+3}], {c}")
        a("s_nop 15")

    a("v_mul_u32_u24 v18, 224, v14")
    a("v_add_u32 v18, v18, v15")
    a("s_mul_i32 s33, s32, 56")
    a(f"s_add_u32 s33, s33, {WT}")
    a("v_add_u32 v18, s33, v18")
    mm_loop(224, 18, False)
    ts()
    a("s_mov_b32 s40, 0")
    a("s_mov_b32 s41, -1")
    for r in range(16):
        a(f"v_mul_f32 v{64+r}, 0x3e8b97f6, v{64+r}")
    for r in range(12, 16):
        a(f"v_cndmask_b32 v{64+r}, v{64+r}, 0, s[40:41]")
    for p in range(8):
        a(f"v_cvt_pk_bf16_f32 v{32+p}, v{64+2*p}, v{65+2*p}")
    a("v_and_b32 v20, 31, v2")
    a("v_lshlrev_b32 v20, 10, v20")
    a("v_lshl_add_u32 v20, v13, 3, v20")
    a("s_lshl_b32 s33, s14, 15")
    a("s_lshl_b32 s34, s15, 8")
    a("s_add_u32 s33, s33, s34")
    a("s_lshl_b32 s34, s32, 6")
    a("s_add_u32 s33, s33, s34")
    a(f"s_add_u32 s33, s33, {WS_Q}")
    for g in range(4):
        a(f"buffer_store_dwordx2 v[{32+2*g}:{33+2*g}], v20, s[28:31], s33 offen offset:{16*g}")
    ts()
    a("s_branch K1_DONE")
    a.label("K1_KV")
    a("s_cmp_ge_u32 s15, 2")
    a("s_cbranch_scc1 K1_WOF")
    a("v_mul_u32_u24 v18, 56, v14")
    a("v_add_u32 v18, v18, v15")
    a(f"v_add_u32 v18, {KV}, v18")
    a("s_cmp_eq_u32 s15, 1")
    a("s_cbranch_scc1 K1_V")
    mm_loop(56, 18, False)
    for p in range(8):
        a(f"v_cvt_pk_bf16_f32 v{32+p}, v{64+2*p}, v{65+2*p}")
    a("s_mov_b32 s40, 0")
    a("s_mov_b32 s41, -1")
    a("v_mov_b32 v21, 0x3f803f80")
    a("v_cndmask_b32 v38, v38, v21, s[40:41]")
    a("v_cndmask_b32 v39, v39, 0, s[40:41]")
    a("v_and_b32 v20, 31, v2")
    a("v_lshlrev_b32 v20, 4, v20")
    a("v_lshl_add_u32 v20, v13, 3, v20")
    a("s_lshl_b32 s33, s14, 11")
    a(f"s_add_u32 s33, s33, {WS_K}")
    for g in range(4):
        a(f"buffer_store_dwordx2 v[{32+2*g}:{33+2*g}], v20, s[28:31], s33 offen offset:{(g>>1)*1024+(g&1)*512}")
    a("s_branch K1_DONE")
    a.label("K1_V")
    mm_loop(56, 18, True)
    a("v_and_b32 v20, 31, v2")
    a("v_cmp_eq_u32 s[40:41], 28, v20")
    a("v_cmp_lt_u32 s[42:43], 28, v20")
    a("s_nop 1")
    for r in range(16):
        a(f"v_cndmask_b32 v{64+r}, v{64+r}, 1.0, s[40:41]")
        a(f"v_cndmask_b32 v{64+r}, v{64+r}, 0, s[42:43]")
    for p in range(8):
        a(f"v_cvt_pk_bf16_f32 v{32+p}, v{64+2*p}, v{65+2*p}")
    a("v_lshlrev_b32 v20, 4, v2")
    a("s_lshl_b32 s33, s14, 11")
    a(f"s_add_u32 s33, s33, {WS_V}")
    a("buffer_store_dwordx4 v[32:35], v20, s[28:31], s33 offen")
    a("buffer_store_dwordx4 v[36:39], v20, s[28:31], s33 offen offset:1024")
    a("s_branch K1_DONE")
    a.label("K1_WOF")
    a("s_load_dwordx2 s[4:5], s[0:1], 32")
    a("s_waitcnt lgkmcnt(0)")
    srd(a, 16, 4, 448 * 896)
    a("v_lshrrev_b32 v20, 4, v2")
    a("v_mul_u32_u24 v20, 7168, v20")
    a("v_and_b32 v21, 15, v2")
    a("v_lshl_add_u32 v20, v21, 1, v20")
    a("v_lshlrev_b32 v21, 4, v2")
    a("v_add_u32 v22, 3584, v20")
    a("s_lshl_b32 s33, s14, 1")
    a("s_add_u32 s33, s33, s15")
    a("s_sub_u32 s33, s33, 2")
    for j in range(4):
        a(f"s_cmp_ge_u32 s33, 392")
        a("s_cbranch_scc1 K1_DONE")
        a("s_mul_i32 s34, s33, 2341")
        a("s_lshr_b32 s34, s34, 16")
        a("s_mul_i32 s35, s34, 28")
        a("s_sub_u32 s35, s33, s35")
        a("s_mul_i32 s36, s34, 28672")
        a("s_lshl_b32 s35, s35, 5")
        a("s_add_u32 s36, s36, s35")
        for i in range(8):
            a(f"buffer_load_ushort v{32+i}, v20, s[16:19], s36 offen offset:{896*i}" if 896*i < 4096 else
              f"buffer_load_ushort v{32+i}, v22, s[16:19], s36 offen offset:{896*i-3584}")
            if i == -1: pass
        a("s_waitcnt vmcnt(0)")
        for i in range(4):
            a(f"v_lshl_or_b32 v{40+i}, v{33+2*i}, 16, v{32+2*i}")
        a("s_lshl_b32 s36, s33, 10")
        a(f"s_add_u32 s36, s36, {WS_WOF}")
        a("buffer_store_dwordx4 v[40:43], v21, s[28:31], s36 offen")
        a("s_add_u32 s33, s33, 128")
    a.label("K1_DONE")
    a("s_endpgm")
    kernel_desc(a, name, 128)
    return name, (256, 1, 1), (512, 1, 1), LDS


def main():
    from gen_k2b import gen_k2
    from gen_gemm import gen_k3, gen_k4
    a = Asm()
    launches = []
    body = Asm()
    for g in (gen_k1, gen_k2, gen_k3, gen_k4):
        launches.append(g(body))
    out = HEADER
    for name, grid, block, lds in launches:
        out += f"; @launch kernel={name} grid=({grid[0]},{grid[1]},{grid[2]}) block=({block[0]},{block[1]},{block[2]}) lds={lds}\n"
    out += '.amdgcn_target "amdgcn-amd-amdhsa--gfx950"\n'
    out += body.text()
    open(sys.argv[1], "w").write(out)

if __name__ == '__main__':
    main()
```

```python
from gen import *
import os

def gen_gemm(a, which):
    k3 = which == 3
    name = f"k{which}_gemm_kernel"
    L = f"K{which}"
    kernel_begin(a, name)
    KD = 2048 if k3 else 1792
    NST = KD // 64
    WP = (1792 if k3 else 2048) * 2
    NGRP = 28 if k3 else 32
    NS = 4
    LDS = NS * 16384
    a("s_cmp_ge_u32 s2, 224")
    a(f"s_cbranch_scc1 {L}_DONE")
    a("s_and_b32 s33, s2, 7")
    a("s_lshr_b32 s34, s2, 3")
    a("s_mul_i32 s35, s34, 37")
    a("s_lshr_b32 s35, s35, 8")
    a("s_mul_i32 s36, s35, 7")
    a("s_sub_u32 s36, s34, s36")
    a("s_lshl_b32 s35, s35, 3")
    a("s_add_u32 s35, s35, s33")
    a(f"s_cmp_ge_u32 s35, {NGRP}")
    a(f"s_cbranch_scc1 {L}_DONE")
    a(f"s_load_dwordx2 s[4:5], s[0:1], {48 if k3 else 64}")
    a(f"s_load_dwordx2 s[6:7], s[0:1], {56 if k3 else 72}")
    a("s_load_dwordx2 s[8:9], s[0:1], 80")
    a("s_load_dwordx2 s[12:13], s[0:1], 96")
    a("v_lshrrev_b32 v1, 6, v0")
    a("v_and_b32 v2, 63, v0")
    a("s_nop 0")
    a("v_readfirstlane_b32 s32, v1")
    a("s_waitcnt lgkmcnt(0)")
    a("s_and_b32 s60, s32, 3")
    a("s_lshr_b32 s61, s32, 2")
    a("s_mov_b32 s32, s60")
    srd(a, 16, 4, KD * WP)
    srd(a, 20, 6, (1792 if k3 else 2048) * 2)
    srd(a, 24, 8, 2048 * 896)
    srd(a, 28, 12, WS_SIZE)
    TS = os.environ.get("TS")
    tsn = [0]
    if TS:
        a("s_load_dwordx2 s[70:71], s[0:1], 88")
        a("s_waitcnt lgkmcnt(0)")
        srd(a, 72, 70, 256)
    def ts():
        if not TS: return
        i = tsn[0]; tsn[0] += 1
        a("s_memtime s[76:77]")
        a("s_waitcnt lgkmcnt(0)")
        a("v_mov_b32 v60, s76")
        a("s_cmp_eq_u32 s2, %s" % TS)
        a(f"s_cbranch_scc0 {L}_TS{i}")
        a("s_cmp_eq_u32 s32, 0")
        a(f"s_cbranch_scc0 {L}_TS{i}")
        a(f"v_mov_b32 v61, {4*i}")
        a("buffer_store_dword v60, v61, s[72:75], 0 offen")
        a.label(f"{L}_TS{i}")
    XOFF = WS_HNT if k3 else WS_U
    a("v_lshrrev_b32 v3, 3, v2")
    a("s_lshl_b32 s37, s32, 3")
    a("v_add_u32 v3, s37, v3")
    a("v_and_b32 v4, 7, v2")
    a("v_lshlrev_b32 v6, 4, v2")
    a("s_lshl_b32 s38, s32, 10")
    a("v_add_u32 v6, s38, v6")
    a("v_add_u32 v7, 4096, v6")
    a("v_bfe_u32 v5, v3, 1, 1")
    a("v_lshlrev_b32 v5, 2, v5")
    a("v_xor_b32 v5, v5, v4")
    a(f"s_mov_b32 s38, {WP}")
    a("v_mul_lo_u32 v8, v3, s38")
    a("v_lshl_add_u32 v8, v5, 4, v8")
    a(f"v_add_u32 v9, {32*WP}, v8")
    a("s_mul_i32 s40, s36, %d" % (NST * 8192))
    a(f"s_add_u32 s40, s40, {XOFF}")
    a("s_lshl_b32 s41, s35, 7")
    a("s_lshl_b32 s42, s32, 10")
    def dma(st):
        slot = (st % NS) * 16384
        a(f"s_add_u32 s43, s42, {slot}")
        a("s_mov_b32 m0, s43")
        a("s_add_u32 s43, s43, 4096")
        a("buffer_load_dwordx4 v6, s[28:31], s40 offen lds")
        a("s_mov_b32 m0, s43")
        a("s_add_u32 s43, s43, 4096")
        a("buffer_load_dwordx4 v7, s[28:31], s40 offen lds")
        a("s_mov_b32 m0, s43")
        a("s_add_u32 s43, s43, 4096")
        a("buffer_load_dwordx4 v8, s[16:19], s41 offen lds")
        a("s_mov_b32 m0, s43")
        if not os.environ.get("SKIPX"): a("s_add_u32 s40, s40, 8192")
        else: a("s_nop 0")
        a("buffer_load_dwordx4 v9, s[16:19], s41 offen lds")
        if not os.environ.get("SKIPW"): a(f"s_add_u32 s41, s41, {64*WP}")
    a("s_cmp_eq_u32 s61, 0")
    a(f"s_cbranch_scc1 {L}_COMPUTE")
    for st in range(NS - 1):
        dma(st)
    a(f"s_waitcnt vmcnt({(NS-2)*4})")
    a("s_barrier")
    a(f"s_mov_b32 s62, {NST//NS}")
    a.label(f"{L}_LLOOP")
    for j in range(NS):
        a(f"s_waitcnt vmcnt({(NS-3)*4})")
        a("s_barrier")
        dma(j + NS - 1)
    a("s_sub_u32 s62, s62, 1")
    a("s_cmp_lg_u32 s62, 0")
    a(f"s_cbranch_scc1 {L}_LLOOP")
    a("s_endpgm")
    a.label(f"{L}_COMPUTE")
    ts()
    a("s_and_b32 s44, s32, 1")
    a("s_lshr_b32 s45, s32, 1")
    a("v_and_b32 v10, 31, v2")
    a("s_lshl_b32 s46, s44, 5")
    a("v_add_u32 v10, s46, v10")
    a("v_lshrrev_b32 v11, 5, v2")
    a("v_bfe_u32 v12, v10, 1, 3")
    a("v_xor_b32 v12, v12, v11")
    a("v_lshlrev_b32 v12, 4, v12")
    a("v_lshl_add_u32 v12, v10, 7, v12")
    for kk in range(1, 4):
        a(f"v_xor_b32 v{12+kk}, {kk*32}, v12")
    a("v_bfe_u32 v16, v2, 2, 2")
    a("v_lshl_add_u32 v16, v11, 3, v16")
    a("v_lshlrev_b32 v16, 7, v16")
    a("v_bfe_u32 v17, v2, 4, 1")
    a("v_and_b32 v18, 3, v2")
    a("v_lshlrev_b32 v18, 3, v18")
    a("v_lshl_add_u32 v17, v17, 5, v18")
    a("s_lshl_b32 s46, s45, 6")
    a("v_add_u32 v17, s46, v17")
    a("v_bfe_u32 v18, v2, 3, 1")
    a("v_lshlrev_b32 v18, 6, v18")
    a("v_xor_b32 v17, v17, v18")
    a("v_add_u32 v16, v16, v17")
    a("v_add_u32 v16, 8192, v16")
    a("v_add_u32 v24, 0x10000, v16")
    for kk in range(4):
        a(f"v_add_u32 v{25+kk}, 0x10000, v{12+kk}")
    if k3:
        a("v_lshlrev_b32 v19, 3, v11")
        a("s_lshl_b32 s46, s35, 7")
        a("s_lshl_b32 s47, s45, 6")
        a("s_add_u32 s46, s46, s47")
    ACC = 64
    FS = [96, 128]
    def rd(st):
        slot = (st % NS) * 16384
        hi = slot >= 65536
        slot &= 0xffff
        for kk in range(4):
            f = FS[st & 1] + 8 * kk
            wv = 24 if hi else 16
            xv = (25 if hi else 12) + kk
            a(f"ds_read_b64_tr_b16 v[{f}:{f+1}], v{wv} offset:{slot+kk*2048}")
            a(f"ds_read_b64_tr_b16 v[{f+2}:{f+3}], v{wv} offset:{slot+kk*2048+512}")
            a(f"ds_read_b128 v[{f+4}:{f+7}], v{xv} offset:{slot}")
    a("s_barrier")
    ts()
    rd(0)
    for r in range(16):
        a(f"v_mov_b32 v{ACC+r}, 0")
    a(f"s_mov_b32 s62, {NST//NS}")
    a.label(f"{L}_CLOOP")
    for st in range(NS):
        a("s_waitcnt lgkmcnt(0)")
        a("s_barrier")
        rd(st + 1)
        for kk in range(4):
            f = FS[st & 1] + 8 * kk
            c = f"v[{ACC}:{ACC+15}]"
            if k3:
                a(f"v_mfma_f32_32x32x16_bf16 v[{ACC}:{ACC+15}], v[{f}:{f+3}], v[{f+4}:{f+7}], {c}")
            else:
                a(f"v_mfma_f32_32x32x16_bf16 v[{ACC}:{ACC+15}], v[{f+4}:{f+7}], v[{f}:{f+3}], {c}")
    a("s_sub_u32 s62, s62, 1")
    a("s_cmp_lg_u32 s62, 0")
    a(f"s_cbranch_scc1 {L}_CLOOP")
    a("s_waitcnt lgkmcnt(0)")
    ts()
    a("v_and_b32 v10, 31, v2")
    if k3:
        for g in range(4):
            a(f"buffer_load_dwordx2 v[{32+2*g}:{33+2*g}], v19, s[20:23], s46 offen offset:{16*g}")
        a("s_lshl_b32 s47, s44, 5")
        a("v_add_u32 v20, s47, v10")
        a("v_bfe_u32 v21, v20, 1, 3")
        a("s_lshl_b32 s47, s45, 2")
        a("v_xor_b32 v21, s47, v21")
        a("v_lshlrev_b32 v20, 7, v20")
        a("v_lshl_add_u32 v20, v21, 4, v20")
        a("v_lshl_add_u32 v20, v11, 3, v20")
        a("s_mul_i32 s47, s36, 28")
        a("s_add_u32 s47, s47, s35")
        a("s_lshl_b32 s47, s47, 13")
        a(f"s_add_u32 s47, s47, {WS_U}")
        a("s_waitcnt vmcnt(0)")
        a("s_nop 7")
        for g in range(4):
            b = ACC + 4 * g
            a(f"v_cvt_pk_bf16_f32 v40, v{b}, v{b+1}")
            a(f"v_cvt_pk_bf16_f32 v41, v{b+2}, v{b+3}")
            a("v_lshlrev_b32 v42, 16, v40")
            a("v_and_b32 v43, 0xffff0000, v40")
            a("v_lshlrev_b32 v44, 16, v41")
            a("v_and_b32 v45, 0xffff0000, v41")
            a(f"v_lshlrev_b32 v46, 16, v{32+2*g}")
            a(f"v_and_b32 v47, 0xffff0000, v{32+2*g}")
            a(f"v_lshlrev_b32 v48, 16, v{33+2*g}")
            a(f"v_and_b32 v49, 0xffff0000, v{33+2*g}")
            for i in range(4):
                a(f"v_add_f32 v{42+i}, v{42+i}, v{46+i}")
            a("v_cvt_pk_bf16_f32 v40, v42, v43")
            a("v_cvt_pk_bf16_f32 v41, v44, v45")
            a("v_lshlrev_b32 v42, 16, v40")
            a("v_and_b32 v43, 0xffff0000, v40")
            a("v_lshlrev_b32 v44, 16, v41")
            a("v_and_b32 v45, 0xffff0000, v41")
            for i in range(4):
                a(f"v_mul_f32 v{46+i}, v{42+i}, v{42+i}")
            for i in range(4):
                a(f"v_mov_b32 v{50+i}, 0x40135761")
                a(f"v_fmac_f32 v{50+i}, 0x3dd2d3e8, v{46+i}")
            for i in range(4):
                a(f"v_mul_f32 v{50+i}, v{50+i}, v{42+i}")
            for i in range(4):
                a(f"v_exp_f32 v{50+i}, -v{50+i}")
            a("s_nop 0")
            for i in range(4):
                a(f"v_add_f32 v{50+i}, 1.0, v{50+i}")
            for i in range(4):
                a(f"v_rcp_f32 v{50+i}, v{50+i}")
            a("s_nop 0")
            for i in range(4):
                a(f"v_mul_f32 v{42+i}, v{42+i}, v{50+i}")
            a("v_cvt_pk_bf16_f32 v54, v42, v43")
            a("v_cvt_pk_bf16_f32 v55, v44, v45")
            a(f"v_xor_b32 v21, {16*g}, v20")
            a(f"buffer_store_dwordx2 v[54:55], v21, s[28:31], s47 offen")
            a("s_nop 1")
    else:
        a(f"v_mul_u32_u24 v20, 896, v10")
        a("v_lshl_add_u32 v20, v11, 3, v20")
        a("s_lshl_b32 s46, s35, 1")
        a("s_add_u32 s46, s46, s45")
        a("s_mul_i32 s47, s46, 28672")
        a("s_lshl_b32 s48, s36, 7")
        a("s_add_u32 s47, s47, s48")
        a("s_lshl_b32 s48, s44, 6")
        a("s_add_u32 s47, s47, s48")
        a(f"s_add_u32 s48, s47, {WS_H}")
        for g in range(4):
            a(f"buffer_load_dwordx2 v[{32+2*g}:{33+2*g}], v20, s[28:31], s48 offen offset:{16*g}")
        a("v_lshlrev_b32 v21, 1, v10")
        a("s_lshl_b32 s46, s46, 6")
        a("buffer_load_ushort v22, v21, s[20:23], s46 offen")
        a("s_waitcnt vmcnt(0)")
        a("v_lshlrev_b32 v22, 16, v22")
        a("s_nop 7")
        for g in range(4):
            b = ACC + 4 * g
            a(f"v_cvt_pk_bf16_f32 v40, v{b}, v{b+1}")
            a(f"v_cvt_pk_bf16_f32 v41, v{b+2}, v{b+3}")
            a("v_lshlrev_b32 v42, 16, v40")
            a("v_and_b32 v43, 0xffff0000, v40")
            a("v_lshlrev_b32 v44, 16, v41")
            a("v_and_b32 v45, 0xffff0000, v41")
            for i in range(4):
                a(f"v_add_f32 v{42+i}, v{42+i}, v22")
            a("v_cvt_pk_bf16_f32 v40, v42, v43")
            a("v_cvt_pk_bf16_f32 v41, v44, v45")
            a("v_lshlrev_b32 v42, 16, v40")
            a("v_and_b32 v43, 0xffff0000, v40")
            a("v_lshlrev_b32 v44, 16, v41")
            a("v_and_b32 v45, 0xffff0000, v41")
            a(f"v_lshlrev_b32 v46, 16, v{32+2*g}")
            a(f"v_and_b32 v47, 0xffff0000, v{32+2*g}")
            a(f"v_lshlrev_b32 v48, 16, v{33+2*g}")
            a(f"v_and_b32 v49, 0xffff0000, v{33+2*g}")
            for i in range(4):
                a(f"v_add_f32 v{42+i}, v{42+i}, v{46+i}")
            a("v_cvt_pk_bf16_f32 v54, v42, v43")
            a("v_cvt_pk_bf16_f32 v55, v44, v45")
            a(f"buffer_store_dwordx2 v[54:55], v20, s[24:27], s47 offen offset:{16*g}")
            a("s_nop 1")
    ts()
    a.label(f"{L}_DONE")
    a("s_endpgm")
    kernel_desc(a, name, 160)
    return name, (224, 1, 1), (512, 1, 1), LDS

def gen_k3(a): return gen_gemm(a, 3)
def gen_k4(a): return gen_gemm(a, 4)
```

```python
from gen import *
import os

def gen_gemm(a, which):
    k3 = which == 3
    name = f"k{which}_gemm_kernel"
    L = f"K{which}"
    kernel_begin(a, name)
    KD = 2048 if k3 else 1792
    NST = KD // 64
    WP = (1792 if k3 else 2048) * 2
    NGRP = 28 if k3 else 32
    NS = int(os.environ.get('NS', '0')) or (8 if k3 else 7)
    BODY = NS if NS % 2 == 0 else 2 * NS
    assert NST % BODY == 0
    LDS = NS * 16384
    a("s_cmp_ge_u32 s2, 224")
    a(f"s_cbranch_scc1 {L}_DONE")
    a("s_and_b32 s33, s2, 7")
    a("s_lshr_b32 s34, s2, 3")
    a("s_mul_i32 s35, s34, 37")
    a("s_lshr_b32 s35, s35, 8")
    a("s_mul_i32 s36, s35, 7")
    a("s_sub_u32 s36, s34, s36")
    a("s_lshl_b32 s35, s35, 3")
    a("s_add_u32 s35, s35, s33")
    a(f"s_cmp_ge_u32 s35, {NGRP}")
    a(f"s_cbranch_scc1 {L}_DONE")
    a(f"s_load_dwordx2 s[4:5], s[0:1], {48 if k3 else 64}")
    a(f"s_load_dwordx2 s[6:7], s[0:1], {56 if k3 else 72}")
    a("s_load_dwordx2 s[8:9], s[0:1], 80")
    a("s_load_dwordx2 s[12:13], s[0:1], 96")
    a("v_lshrrev_b32 v1, 6, v0")
    a("v_and_b32 v2, 63, v0")
    a("s_nop 0")
    a("v_readfirstlane_b32 s32, v1")
    a("s_waitcnt lgkmcnt(0)")
    a("s_and_b32 s60, s32, 3")
    a("s_lshr_b32 s61, s32, 2")
    a("s_mov_b32 s32, s60")
    srd(a, 16, 4, KD * WP)
    srd(a, 20, 6, (1792 if k3 else 2048) * 2)
    srd(a, 24, 8, 2048 * 896)
    srd(a, 28, 12, WS_SIZE)
    TS = os.environ.get("TS")
    tsn = [0]
    if TS:
        a("s_load_dwordx2 s[70:71], s[0:1], 88")
        a("s_waitcnt lgkmcnt(0)")
        srd(a, 72, 70, 256)
    def ts():
        if not TS: return
        i = tsn[0]; tsn[0] += 1
        a("s_memtime s[76:77]")
        a("s_waitcnt lgkmcnt(0)")
        a("v_mov_b32 v60, s76")
        a("s_cmp_eq_u32 s2, %s" % TS)
        a(f"s_cbranch_scc0 {L}_TS{i}")
        a("s_cmp_eq_u32 s32, 0")
        a(f"s_cbranch_scc0 {L}_TS{i}")
        a(f"v_mov_b32 v61, {4*i}")
        a("buffer_store_dword v60, v61, s[72:75], 0 offen")
        a.label(f"{L}_TS{i}")
    XOFF = WS_HNT if k3 else WS_U
    a("v_lshrrev_b32 v3, 3, v2")
    a("s_lshl_b32 s37, s32, 3")
    a("v_add_u32 v3, s37, v3")
    a("v_and_b32 v4, 7, v2")
    a("v_lshlrev_b32 v6, 4, v2")
    a("s_lshl_b32 s38, s32, 10")
    a("v_add_u32 v6, s38, v6")
    a("v_add_u32 v7, 4096, v6")
    a("v_bfe_u32 v5, v3, 1, 1")
    a("v_lshlrev_b32 v5, 2, v5")
    a("v_xor_b32 v5, v5, v4")
    a(f"s_mov_b32 s38, {WP}")
    a("v_mul_lo_u32 v8, v3, s38")
    a("v_lshl_add_u32 v8, v5, 4, v8")
    a(f"v_add_u32 v9, {32*WP}, v8")
    a("s_mul_i32 s40, s36, %d" % (NST * 8192))
    a(f"s_add_u32 s40, s40, {XOFF}")
    a("s_lshl_b32 s41, s35, 7")
    a("s_lshl_b32 s42, s32, 10")
    def dma(st):
        slot = (st % NS) * 16384
        a(f"s_add_u32 s43, s42, {slot}")
        a("s_mov_b32 m0, s43")
        a("s_add_u32 s43, s43, 4096")
        a("buffer_load_dwordx4 v6, s[28:31], s40 offen lds")
        a("s_mov_b32 m0, s43")
        a("s_add_u32 s43, s43, 4096")
        a("buffer_load_dwordx4 v7, s[28:31], s40 offen lds")
        a("s_mov_b32 m0, s43")
        a("s_add_u32 s43, s43, 4096")
        a("buffer_load_dwordx4 v8, s[16:19], s41 offen lds")
        a("s_mov_b32 m0, s43")
        if not os.environ.get("SKIPX"): a("s_add_u32 s40, s40, 8192")
        else: a("s_nop 0")
        a("buffer_load_dwordx4 v9, s[16:19], s41 offen lds")
        if not os.environ.get("SKIPW"): a(f"s_add_u32 s41, s41, {64*WP}")
    a("s_cmp_eq_u32 s61, 0")
    a(f"s_cbranch_scc1 {L}_COMPUTE")
    for st in range(NS - 1):
        dma(st)
    a(f"s_waitcnt vmcnt({(NS-2)*4})")
    a("s_barrier")
    a(f"s_mov_b32 s62, {NST//BODY}")
    a.label(f"{L}_LLOOP")
    for j in range(BODY):
        a(f"s_waitcnt vmcnt({(NS-3)*4})")
        a("s_barrier")
        dma(j + NS - 1)
    a("s_sub_u32 s62, s62, 1")
    a("s_cmp_lg_u32 s62, 0")
    a(f"s_cbranch_scc1 {L}_LLOOP")
    a("s_endpgm")
    a.label(f"{L}_COMPUTE")
    ts()
    a("s_and_b32 s44, s32, 1")
    a("s_lshr_b32 s45, s32, 1")
    a("v_and_b32 v10, 31, v2")
    a("s_lshl_b32 s46, s44, 5")
    a("v_add_u32 v10, s46, v10")
    a("v_lshrrev_b32 v11, 5, v2")
    a("v_bfe_u32 v12, v10, 1, 3")
    a("v_xor_b32 v12, v12, v11")
    a("v_lshlrev_b32 v12, 4, v12")
    a("v_lshl_add_u32 v12, v10, 7, v12")
    for kk in range(1, 4):
        a(f"v_xor_b32 v{12+kk}, {kk*32}, v12")
    a("v_bfe_u32 v16, v2, 2, 2")
    a("v_lshl_add_u32 v16, v11, 3, v16")
    a("v_lshlrev_b32 v16, 7, v16")
    a("v_bfe_u32 v17, v2, 4, 1")
    a("v_and_b32 v18, 3, v2")
    a("v_lshlrev_b32 v18, 3, v18")
    a("v_lshl_add_u32 v17, v17, 5, v18")
    a("s_lshl_b32 s46, s45, 6")
    a("v_add_u32 v17, s46, v17")
    a("v_bfe_u32 v18, v2, 3, 1")
    a("v_lshlrev_b32 v18, 6, v18")
    a("v_xor_b32 v17, v17, v18")
    a("v_add_u32 v16, v16, v17")
    a("v_add_u32 v16, 8192, v16")
    a("v_add_u32 v24, 0x10000, v16")
    for kk in range(4):
        a(f"v_add_u32 v{25+kk}, 0x10000, v{12+kk}")
    if k3:
        a("v_lshlrev_b32 v19, 3, v11")
        a("s_lshl_b32 s46, s35, 7")
        a("s_lshl_b32 s47, s45, 6")
        a("s_add_u32 s46, s46, s47")
    ACC = 64
    FS = [96, 128]
    def rd(st):
        slot = (st % NS) * 16384
        hi = slot >= 65536
        slot &= 0xffff
        for kk in range(4):
            f = FS[st & 1] + 8 * kk
            wv = 24 if hi else 16
            xv = (25 if hi else 12) + kk
            a(f"ds_read_b64_tr_b16 v[{f}:{f+1}], v{wv} offset:{slot+kk*2048}")
            a(f"ds_read_b64_tr_b16 v[{f+2}:{f+3}], v{wv} offset:{slot+kk*2048+512}")
            a(f"ds_read_b128 v[{f+4}:{f+7}], v{xv} offset:{slot}")
    a("s_barrier")
    ts()
    rd(0)
    for r in range(16):
        a(f"v_mov_b32 v{ACC+r}, 0")
    a(f"s_mov_b32 s62, {NST//BODY}")
    a.label(f"{L}_CLOOP")
    for st in range(BODY):
        a("s_waitcnt lgkmcnt(0)")
        a("s_barrier")
        rd(st + 1)
        for kk in range(4):
            f = FS[st & 1] + 8 * kk
            c = f"v[{ACC}:{ACC+15}]"
            if k3:
                a(f"v_mfma_f32_32x32x16_bf16 v[{ACC}:{ACC+15}], v[{f}:{f+3}], v[{f+4}:{f+7}], {c}")
            else:
                a(f"v_mfma_f32_32x32x16_bf16 v[{ACC}:{ACC+15}], v[{f+4}:{f+7}], v[{f}:{f+3}], {c}")
    a("s_sub_u32 s62, s62, 1")
    a("s_cmp_lg_u32 s62, 0")
    a(f"s_cbranch_scc1 {L}_CLOOP")
    a("s_waitcnt lgkmcnt(0)")
    ts()
    a("v_and_b32 v10, 31, v2")
    if k3:
        for g in range(4):
            a(f"buffer_load_dwordx2 v[{32+2*g}:{33+2*g}], v19, s[20:23], s46 offen offset:{16*g}")
        a("s_lshl_b32 s47, s44, 5")
        a("v_add_u32 v20, s47, v10")
        a("v_bfe_u32 v21, v20, 1, 3")
        a("s_lshl_b32 s47, s45, 2")
        a("v_xor_b32 v21, s47, v21")
        a("v_lshlrev_b32 v20, 7, v20")
        a("v_lshl_add_u32 v20, v21, 4, v20")
        a("v_lshl_add_u32 v20, v11, 3, v20")
        a("s_mul_i32 s47, s36, 28")
        a("s_add_u32 s47, s47, s35")
        a("s_lshl_b32 s47, s47, 13")
        a(f"s_add_u32 s47, s47, {WS_U}")
        a("s_waitcnt vmcnt(0)")
        a("s_nop 7")
        for g in range(4):
            b = ACC + 4 * g
            a(f"v_cvt_pk_bf16_f32 v40, v{b}, v{b+1}")
            a(f"v_cvt_pk_bf16_f32 v41, v{b+2}, v{b+3}")
            a("v_lshlrev_b32 v42, 16, v40")
            a("v_and_b32 v43, 0xffff0000, v40")
            a("v_lshlrev_b32 v44, 16, v41")
            a("v_and_b32 v45, 0xffff0000, v41")
            a(f"v_lshlrev_b32 v46, 16, v{32+2*g}")
            a(f"v_and_b32 v47, 0xffff0000, v{32+2*g}")
            a(f"v_lshlrev_b32 v48, 16, v{33+2*g}")
            a(f"v_and_b32 v49, 0xffff0000, v{33+2*g}")
            for i in range(4):
                a(f"v_add_f32 v{42+i}, v{42+i}, v{46+i}")
            a("v_cvt_pk_bf16_f32 v40, v42, v43")
            a("v_cvt_pk_bf16_f32 v41, v44, v45")
            a("v_lshlrev_b32 v42, 16, v40")
            a("v_and_b32 v43, 0xffff0000, v40")
            a("v_lshlrev_b32 v44, 16, v41")
            a("v_and_b32 v45, 0xffff0000, v41")
            for i in range(4):
                a(f"v_mul_f32 v{46+i}, v{42+i}, v{42+i}")
            for i in range(4):
                a(f"v_mov_b32 v{50+i}, 0x40135761")
                a(f"v_fmac_f32 v{50+i}, 0x3dd2d3e8, v{46+i}")
            for i in range(4):
                a(f"v_mul_f32 v{50+i}, v{50+i}, v{42+i}")
            for i in range(4):
                a(f"v_exp_f32 v{50+i}, -v{50+i}")
            a("s_nop 0")
            for i in range(4):
                a(f"v_add_f32 v{50+i}, 1.0, v{50+i}")
            for i in range(4):
                a(f"v_rcp_f32 v{50+i}, v{50+i}")
            a("s_nop 0")
            for i in range(4):
                a(f"v_mul_f32 v{42+i}, v{42+i}, v{50+i}")
            a("v_cvt_pk_bf16_f32 v54, v42, v43")
            a("v_cvt_pk_bf16_f32 v55, v44, v45")
            a(f"v_xor_b32 v21, {16*g}, v20")
            a(f"buffer_store_dwordx2 v[54:55], v21, s[28:31], s47 offen")
            a("s_nop 1")
    else:
        a(f"v_mul_u32_u24 v20, 896, v10")
        a("v_lshl_add_u32 v20, v11, 3, v20")
        a("s_lshl_b32 s46, s35, 1")
        a("s_add_u32 s46, s46, s45")
        a("s_mul_i32 s47, s46, 28672")
        a("s_lshl_b32 s48, s36, 7")
        a("s_add_u32 s47, s47, s48")
        a("s_lshl_b32 s48, s44, 6")
        a("s_add_u32 s47, s47, s48")
        a(f"s_add_u32 s48, s47, {WS_H}")
        for g in range(4):
            a(f"buffer_load_dwordx2 v[{32+2*g}:{33+2*g}], v20, s[28:31], s48 offen offset:{16*g}")
        a("v_lshlrev_b32 v21, 1, v10")
        a("s_lshl_b32 s46, s46, 6")
        a("buffer_load_ushort v22, v21, s[20:23], s46 offen")
        a("s_waitcnt vmcnt(0)")
        a("v_lshlrev_b32 v22, 16, v22")
        a("s_nop 7")
        for g in range(4):
            b = ACC + 4 * g
            a(f"v_cvt_pk_bf16_f32 v40, v{b}, v{b+1}")
            a(f"v_cvt_pk_bf16_f32 v41, v{b+2}, v{b+3}")
            a("v_lshlrev_b32 v42, 16, v40")
            a("v_and_b32 v43, 0xffff0000, v40")
            a("v_lshlrev_b32 v44, 16, v41")
            a("v_and_b32 v45, 0xffff0000, v41")
            for i in range(4):
                a(f"v_add_f32 v{42+i}, v{42+i}, v22")
            a("v_cvt_pk_bf16_f32 v40, v42, v43")
            a("v_cvt_pk_bf16_f32 v41, v44, v45")
            a("v_lshlrev_b32 v42, 16, v40")
            a("v_and_b32 v43, 0xffff0000, v40")
            a("v_lshlrev_b32 v44, 16, v41")
            a("v_and_b32 v45, 0xffff0000, v41")
            a(f"v_lshlrev_b32 v46, 16, v{32+2*g}")
            a(f"v_and_b32 v47, 0xffff0000, v{32+2*g}")
            a(f"v_lshlrev_b32 v48, 16, v{33+2*g}")
            a(f"v_and_b32 v49, 0xffff0000, v{33+2*g}")
            for i in range(4):
                a(f"v_add_f32 v{42+i}, v{42+i}, v{46+i}")
            a("v_cvt_pk_bf16_f32 v54, v42, v43")
            a("v_cvt_pk_bf16_f32 v55, v44, v45")
            a(f"buffer_store_dwordx2 v[54:55], v20, s[24:27], s47 offen offset:{16*g}")
            a("s_nop 1")
    ts()
    a.label(f"{L}_DONE")
    a("s_endpgm")
    kernel_desc(a, name, 160)
    return name, (224, 1, 1), (512, 1, 1), LDS

def gen_k3(a): return gen_gemm(a, 3)
def gen_k4(a): return gen_gemm(a, 4)
```

```python
from gen import *
import os

def gen_gemm(a, which):
    k3 = which == 3
    name = f"k{which}_gemm_kernel"
    L = f"K{which}"
    kernel_begin(a, name)
    KD = 2048 if k3 else 1792
    NST = KD // 64
    WP = (1792 if k3 else 2048) * 2
    NGRP = 28 if k3 else 32
    NS = int(os.environ.get('NS', '0')) or (8 if k3 else 7)
    BODY = NS if NS % 2 == 0 else 2 * NS
    assert NST % BODY == 0
    LDS = NS * 16384
    a("s_cmp_ge_u32 s2, 224")
    a(f"s_cbranch_scc1 {L}_DONE")
    a("s_and_b32 s33, s2, 7")
    a("s_lshr_b32 s34, s2, 3")
    a("s_mul_i32 s35, s34, 37")
    a("s_lshr_b32 s35, s35, 8")
    a("s_mul_i32 s36, s35, 7")
    a("s_sub_u32 s36, s34, s36")
    a("s_lshl_b32 s35, s35, 3")
    a("s_add_u32 s35, s35, s33")
    a(f"s_cmp_ge_u32 s35, {NGRP}")
    a(f"s_cbranch_scc1 {L}_DONE")
    a(f"s_load_dwordx2 s[4:5], s[0:1], {48 if k3 else 64}")
    a(f"s_load_dwordx2 s[6:7], s[0:1], {56 if k3 else 72}")
    a("s_load_dwordx2 s[8:9], s[0:1], 80")
    a("s_load_dwordx2 s[12:13], s[0:1], 96")
    a("v_lshrrev_b32 v1, 6, v0")
    a("v_and_b32 v2, 63, v0")
    a("s_nop 0")
    a("v_readfirstlane_b32 s32, v1")
    a("s_waitcnt lgkmcnt(0)")
    a("s_and_b32 s60, s32, 3")
    a("s_lshr_b32 s61, s32, 2")
    a("s_mov_b32 s32, s60")
    srd(a, 16, 4, KD * WP)
    srd(a, 20, 6, (1792 if k3 else 2048) * 2)
    srd(a, 24, 8, 2048 * 896)
    srd(a, 28, 12, WS_SIZE)
    TS = os.environ.get("TS")
    tsn = [0]
    if TS:
        a("s_load_dwordx2 s[70:71], s[0:1], 88")
        a("s_waitcnt lgkmcnt(0)")
        srd(a, 72, 70, 256)
    def ts():
        if not TS: return
        i = tsn[0]; tsn[0] += 1
        a("s_memtime s[76:77]")
        a("s_waitcnt lgkmcnt(0)")
        a("v_mov_b32 v60, s76")
        a("s_cmp_eq_u32 s2, %s" % TS)
        a(f"s_cbranch_scc0 {L}_TS{i}")
        a("s_cmp_eq_u32 s32, 0")
        a(f"s_cbranch_scc0 {L}_TS{i}")
        a(f"v_mov_b32 v61, {4*i}")
        a("buffer_store_dword v60, v61, s[72:75], 0 offen")
        a.label(f"{L}_TS{i}")
    XOFF = WS_HNT if k3 else WS_U
    a("v_lshrrev_b32 v3, 3, v2")
    a("s_lshl_b32 s37, s32, 3")
    a("v_add_u32 v3, s37, v3")
    a("v_and_b32 v4, 7, v2")
    a("v_lshlrev_b32 v6, 4, v2")
    a("s_lshl_b32 s38, s32, 10")
    a("v_add_u32 v6, s38, v6")
    a("v_add_u32 v7, 4096, v6")
    a("v_bfe_u32 v5, v3, 1, 1")
    a("v_lshlrev_b32 v5, 2, v5")
    a("v_xor_b32 v5, v5, v4")
    a(f"s_mov_b32 s38, {WP}")
    a("v_mul_lo_u32 v8, v3, s38")
    a("v_lshl_add_u32 v8, v5, 4, v8")
    a(f"v_add_u32 v9, {32*WP}, v8")
    a("s_mul_i32 s40, s36, %d" % (NST * 8192))
    a(f"s_add_u32 s40, s40, {XOFF}")
    a("s_lshl_b32 s41, s35, 7")
    a("s_lshl_b32 s42, s32, 10")
    def dma(st):
        slot = (st % NS) * 16384
        a(f"s_add_u32 s43, s42, {slot}")
        a("s_mov_b32 m0, s43")
        a("s_add_u32 s43, s43, 4096")
        a("buffer_load_dwordx4 v6, s[28:31], s40 offen lds")
        a("s_mov_b32 m0, s43")
        a("s_add_u32 s43, s43, 4096")
        a("buffer_load_dwordx4 v7, s[28:31], s40 offen lds")
        a("s_mov_b32 m0, s43")
        a("s_add_u32 s43, s43, 4096")
        a("buffer_load_dwordx4 v8, s[16:19], s41 offen lds")
        a("s_mov_b32 m0, s43")
        if not os.environ.get("SKIPX"): a("s_add_u32 s40, s40, 8192")
        else: a("s_nop 0")
        a("buffer_load_dwordx4 v9, s[16:19], s41 offen lds")
        if not os.environ.get("SKIPW"): a(f"s_add_u32 s41, s41, {64*WP}")
    a("s_cmp_eq_u32 s61, 0")
    a(f"s_cbranch_scc1 {L}_COMPUTE")
    for st in range(NS - 1):
        dma(st)
    a(f"s_waitcnt vmcnt({(NS-2)*4})")
    a("s_barrier")
    a(f"s_mov_b32 s62, {NST//BODY}")
    a.label(f"{L}_LLOOP")
    for j in range(BODY):
        a(f"s_waitcnt vmcnt({(NS-3)*4})")
        a("s_barrier")
        dma(j + NS - 1)
    a("s_sub_u32 s62, s62, 1")
    a("s_cmp_lg_u32 s62, 0")
    a(f"s_cbranch_scc1 {L}_LLOOP")
    a("s_endpgm")
    a.label(f"{L}_COMPUTE")
    ts()
    a("s_and_b32 s44, s32, 1")
    a("s_lshr_b32 s45, s32, 1")
    a("v_and_b32 v10, 31, v2")
    a("s_lshl_b32 s46, s44, 5")
    a("v_add_u32 v10, s46, v10")
    a("v_lshrrev_b32 v11, 5, v2")
    a("v_bfe_u32 v12, v10, 1, 3")
    a("v_xor_b32 v12, v12, v11")
    a("v_lshlrev_b32 v12, 4, v12")
    a("v_lshl_add_u32 v12, v10, 7, v12")
    for kk in range(1, 4):
        a(f"v_xor_b32 v{12+kk}, {kk*32}, v12")
    a("v_bfe_u32 v16, v2, 2, 2")
    a("v_lshl_add_u32 v16, v11, 3, v16")
    a("v_lshlrev_b32 v16, 7, v16")
    a("v_bfe_u32 v17, v2, 4, 1")
    a("v_and_b32 v18, 3, v2")
    a("v_lshlrev_b32 v18, 3, v18")
    a("v_lshl_add_u32 v17, v17, 5, v18")
    a("s_lshl_b32 s46, s45, 6")
    a("v_add_u32 v17, s46, v17")
    a("v_bfe_u32 v18, v2, 3, 1")
    a("v_lshlrev_b32 v18, 6, v18")
    a("v_xor_b32 v17, v17, v18")
    a("v_add_u32 v16, v16, v17")
    a("v_add_u32 v16, 8192, v16")
    a("v_add_u32 v24, 0x10000, v16")
    for kk in range(4):
        a(f"v_add_u32 v{25+kk}, 0x10000, v{12+kk}")
    if k3:
        a("v_lshlrev_b32 v19, 3, v11")
        a("s_lshl_b32 s46, s35, 7")
        a("s_lshl_b32 s47, s45, 6")
        a("s_add_u32 s46, s46, s47")
        for g in range(4):
            a(f"buffer_load_dwordx2 v[{160+2*g}:{161+2*g}], v19, s[20:23], s46 offen offset:{16*g}")
    else:
        a("v_and_b32 v21, 31, v2")
        a(f"v_mul_u32_u24 v20, 896, v21")
        a("v_lshl_add_u32 v20, v11, 3, v20")
        a("s_lshl_b32 s46, s35, 1")
        a("s_add_u32 s46, s46, s45")
        a("s_mul_i32 s47, s46, 28672")
        a("s_lshl_b32 s48, s36, 7")
        a("s_add_u32 s47, s47, s48")
        a("s_lshl_b32 s48, s44, 6")
        a("s_add_u32 s47, s47, s48")
        a(f"s_add_u32 s48, s47, {WS_H}")
        for g in range(4):
            a(f"buffer_load_dwordx2 v[{160+2*g}:{161+2*g}], v20, s[28:31], s48 offen offset:{16*g}")
        a("v_lshlrev_b32 v21, 1, v21")
        a("s_lshl_b32 s46, s46, 6")
        a("buffer_load_ushort v22, v21, s[20:23], s46 offen")
    ACC = 64
    FS = [96, 128]
    def rd(st):
        slot = (st % NS) * 16384
        hi = slot >= 65536
        slot &= 0xffff
        for kk in range(4):
            f = FS[st & 1] + 8 * kk
            wv = 24 if hi else 16
            xv = (25 if hi else 12) + kk
            a(f"ds_read_b64_tr_b16 v[{f}:{f+1}], v{wv} offset:{slot+kk*2048}")
            a(f"ds_read_b64_tr_b16 v[{f+2}:{f+3}], v{wv} offset:{slot+kk*2048+512}")
            a(f"ds_read_b128 v[{f+4}:{f+7}], v{xv} offset:{slot}")
    a("s_barrier")
    ts()
    rd(0)
    for r in range(16):
        a(f"v_mov_b32 v{ACC+r}, 0")
    a(f"s_mov_b32 s62, {NST//BODY}")
    a.label(f"{L}_CLOOP")
    for st in range(BODY):
        a("s_waitcnt lgkmcnt(0)")
        a("s_barrier")
        rd(st + 1)
        for kk in range(4):
            f = FS[st & 1] + 8 * kk
            c = f"v[{ACC}:{ACC+15}]"
            if k3:
                a(f"v_mfma_f32_32x32x16_bf16 v[{ACC}:{ACC+15}], v[{f}:{f+3}], v[{f+4}:{f+7}], {c}")
            else:
                a(f"v_mfma_f32_32x32x16_bf16 v[{ACC}:{ACC+15}], v[{f+4}:{f+7}], v[{f}:{f+3}], {c}")
    a("s_sub_u32 s62, s62, 1")
    a("s_cmp_lg_u32 s62, 0")
    a(f"s_cbranch_scc1 {L}_CLOOP")
    a("s_waitcnt lgkmcnt(0)")
    ts()
    a("v_and_b32 v10, 31, v2")
    if k3:
        a("s_lshl_b32 s47, s44, 5")
        a("v_add_u32 v20, s47, v10")
        a("v_bfe_u32 v21, v20, 1, 3")
        a("s_lshl_b32 s47, s45, 2")
        a("v_xor_b32 v21, s47, v21")
        a("v_lshlrev_b32 v20, 7, v20")
        a("v_lshl_add_u32 v20, v21, 4, v20")
        a("v_lshl_add_u32 v20, v11, 3, v20")
        a("s_mul_i32 s47, s36, 28")
        a("s_add_u32 s47, s47, s35")
        a("s_lshl_b32 s47, s47, 13")
        a(f"s_add_u32 s47, s47, {WS_U}")
        a("s_waitcnt vmcnt(0)")
        a("s_nop 7")
        for g in range(4):
            b = ACC + 4 * g
            a(f"v_cvt_pk_bf16_f32 v40, v{b}, v{b+1}")
            a(f"v_cvt_pk_bf16_f32 v41, v{b+2}, v{b+3}")
            a("v_lshlrev_b32 v42, 16, v40")
            a("v_and_b32 v43, 0xffff0000, v40")
            a("v_lshlrev_b32 v44, 16, v41")
            a("v_and_b32 v45, 0xffff0000, v41")
            a(f"v_lshlrev_b32 v46, 16, v{160+2*g}")
            a(f"v_and_b32 v47, 0xffff0000, v{160+2*g}")
            a(f"v_lshlrev_b32 v48, 16, v{161+2*g}")
            a(f"v_and_b32 v49, 0xffff0000, v{161+2*g}")
            for i in range(4):
                a(f"v_add_f32 v{42+i}, v{42+i}, v{46+i}")
            a("v_cvt_pk_bf16_f32 v40, v42, v43")
            a("v_cvt_pk_bf16_f32 v41, v44, v45")
            a("v_lshlrev_b32 v42, 16, v40")
            a("v_and_b32 v43, 0xffff0000, v40")
            a("v_lshlrev_b32 v44, 16, v41")
            a("v_and_b32 v45, 0xffff0000, v41")
            for i in range(4):
                a(f"v_mul_f32 v{46+i}, v{42+i}, v{42+i}")
            for i in range(4):
                a(f"v_mov_b32 v{50+i}, 0x40135761")
                a(f"v_fmac_f32 v{50+i}, 0x3dd2d3e8, v{46+i}")
            for i in range(4):
                a(f"v_mul_f32 v{50+i}, v{50+i}, v{42+i}")
            for i in range(4):
                a(f"v_exp_f32 v{50+i}, -v{50+i}")
            a("s_nop 0")
            for i in range(4):
                a(f"v_add_f32 v{50+i}, 1.0, v{50+i}")
            for i in range(4):
                a(f"v_rcp_f32 v{50+i}, v{50+i}")
            a("s_nop 0")
            for i in range(4):
                a(f"v_mul_f32 v{42+i}, v{42+i}, v{50+i}")
            a("v_cvt_pk_bf16_f32 v54, v42, v43")
            a("v_cvt_pk_bf16_f32 v55, v44, v45")
            a(f"v_xor_b32 v21, {16*g}, v20")
            a(f"buffer_store_dwordx2 v[54:55], v21, s[28:31], s47 offen")
            a("s_nop 1")
    else:
        a("s_waitcnt vmcnt(0)")
        a("v_lshlrev_b32 v22, 16, v22")
        a("s_nop 7")
        for g in range(4):
            b = ACC + 4 * g
            a(f"v_cvt_pk_bf16_f32 v40, v{b}, v{b+1}")
            a(f"v_cvt_pk_bf16_f32 v41, v{b+2}, v{b+3}")
            a("v_lshlrev_b32 v42, 16, v40")
            a("v_and_b32 v43, 0xffff0000, v40")
            a("v_lshlrev_b32 v44, 16, v41")
            a("v_and_b32 v45, 0xffff0000, v41")
            for i in range(4):
                a(f"v_add_f32 v{42+i}, v{42+i}, v22")
            a("v_cvt_pk_bf16_f32 v40, v42, v43")
            a("v_cvt_pk_bf16_f32 v41, v44, v45")
            a("v_lshlrev_b32 v42, 16, v40")
            a("v_and_b32 v43, 0xffff0000, v40")
            a("v_lshlrev_b32 v44, 16, v41")
            a("v_and_b32 v45, 0xffff0000, v41")
            a(f"v_lshlrev_b32 v46, 16, v{160+2*g}")
            a(f"v_and_b32 v47, 0xffff0000, v{160+2*g}")
            a(f"v_lshlrev_b32 v48, 16, v{161+2*g}")
            a(f"v_and_b32 v49, 0xffff0000, v{161+2*g}")
            for i in range(4):
                a(f"v_add_f32 v{42+i}, v{42+i}, v{46+i}")
            a("v_cvt_pk_bf16_f32 v54, v42, v43")
            a("v_cvt_pk_bf16_f32 v55, v44, v45")
            a(f"buffer_store_dwordx2 v[54:55], v20, s[24:27], s47 offen offset:{16*g}")
            a("s_nop 1")
    ts()
    a.label(f"{L}_DONE")
    a("s_endpgm")
    kernel_desc(a, name, 168)
    return name, (224, 1, 1), (512, 1, 1), LDS

def gen_k3(a): return gen_gemm(a, 3)
def gen_k4(a): return gen_gemm(a, 4)
```

```python
from gen import *
import os

WS_WOF = 9 << 20; WS_KN = 10 << 20

def gen_k2(a):
    name = "k2_attn_kernel"
    kernel_begin(a, name)
    LDS = 163840
    WOB = 65536
    MISC = 151552
    THR = float(os.environ.get("THR", "8.0"))
    import struct
    thr_bits = struct.unpack("<I", struct.pack("<f", THR))[0]
    a("s_cmp_ge_u32 s2, 256")
    a("s_cbranch_scc1 K2_DONE")
    a("s_load_dwordx2 s[4:5], s[0:1], 0")
    a("s_load_dwordx2 s[12:13], s[0:1], 96")
    a("s_load_dwordx2 s[6:7], s[0:1], 48")
    a("s_load_dwordx2 s[8:9], s[0:1], 64")
    a("v_lshrrev_b32 v1, 6, v0")
    a("v_and_b32 v2, 63, v0")
    a("s_nop 0")
    a("v_readfirstlane_b32 s32, v1")
    a("s_waitcnt lgkmcnt(0)")
    a("s_and_b32 s33, s32, 3")
    a("s_lshr_b32 s34, s32, 2")
    srd(a, 16, 4, 2048 * 896)
    srd(a, 28, 12, WS_SIZE)
    TS = os.environ.get("TS")
    tsn = [0]
    if TS:
        a("s_load_dwordx2 s[60:61], s[0:1], 88")
        a("s_waitcnt lgkmcnt(0)")
        srd(a, 64, 60, 256)
    def ts():
        if not TS: return
        i = tsn[0]; tsn[0] += 1
        a("s_memtime s[70:71]")
        a("s_waitcnt lgkmcnt(0)")
        a("v_mov_b32 v250, s70")
        a("s_cmp_eq_u32 s2, %s" % TS)
        a(f"s_cbranch_scc0 K2_TS{i}")
        a("s_cmp_eq_u32 s32, 0")
        a(f"s_cbranch_scc0 K2_TS{i}")
        a(f"v_mov_b32 v251, {4*i}")
        a("buffer_store_dword v250, v251, s[64:67], 0 offen")
        a.label(f"K2_TS{i}")
    ts()
    RT = os.environ.get("RT")
    def rt(i):
        if not RT: return
        a("s_memrealtime s[80:81]")
        a("s_waitcnt lgkmcnt(0)")
        a("v_mov_b32 v250, s80")
        a("v_mov_b32 v251, 0")
        a("s_lshl_b32 s82, s2, 6")
        a("s_lshl_b32 s83, s32, 3")
        a("s_add_u32 s82, s82, s83")
        a(f"s_add_u32 s82, s82, {(16<<20) + 4*i}")
        a("buffer_store_dword v250, v251, s[28:31], s82 offen")
    rt(0)
    Q = 16; S = [24, 40]; P = 56; O = 64; KB = [80, 88]; VB = 96; WR = 104
    TM = 216
    a("v_lshlrev_b32 v6, 4, v2")
    a("s_lshl_b32 s38, s34, 16")
    a("s_lshl_b32 s39, s33, 10")
    a("s_add_u32 s38, s38, s39")
    a("s_lshl_b32 s40, s34, 15")
    a("s_add_u32 s39, s39, s40")
    def kv_items(c):
        sl = (c & 3) * 8192
        its = []
        for (wsb, lo) in ((WS_K, 0), (WS_V, 4096)):
            its.append([f"s_add_u32 s40, s39, {sl+lo}", f"s_add_u32 s41, s38, {wsb+c*4096}", "s_mov_b32 m0, s40", "s_nop 0",
                        "buffer_load_dwordx4 v6, s[28:31], s41 offen lds"])
        return its
    def kvdma(c):
        for it in kv_items(c):
            for l in it: a(l)
    kvdma(0)
    kvdma(1)
    a("v_and_b32 v3, 7, v2")
    a("v_lshlrev_b32 v3, 10, v3")
    a("v_bfe_u32 v4, v2, 3, 2")
    a("v_lshl_add_u32 v3, v4, 6, v3")
    a("v_lshrrev_b32 v5, 5, v2")
    a("v_lshl_add_u32 v3, v5, 4, v3")
    a("s_lshl_b32 s35, s2, 13")
    a("s_lshl_b32 s36, s33, 8")
    a("s_add_u32 s35, s35, s36")
    a(f"buffer_load_dwordx4 v[{Q}:{Q+3}], v3, s[28:31], s35 offen")
    a(f"buffer_load_dwordx4 v[{Q+4}:{Q+7}], v3, s[28:31], s35 offen offset:32")
    a("v_lshlrev_b32 v8, 2, v2")
    a(f"s_mov_b32 s40, {WS_KN}")
    a(f"buffer_load_dword v{216+10}, v8, s[28:31], s40 offen")
    a("s_lshl_b32 s40, s34, 15")
    a("v_add_u32 v7, s40, v6")
    a("s_lshl_b32 s44, s32, 12")
    a(f"s_add_u32 s44, s44, {WS_WOF}")
    a("s_lshl_b32 s45, s32, 12")
    a(f"s_add_u32 s45, s45, {WOB}")
    srd(a, 20, 6, 2048 * 3584)
    srd(a, 24, 8, 1792 * 4096)
    a("s_and_b32 s50, s2, 7")
    a("s_lshr_b32 s51, s2, 3")
    a("v_lshrrev_b32 v8, 3, v2")
    a("v_and_b32 v9, 7, v2")
    a("s_movk_i32 s40, 3584")
    a("v_mul_lo_u32 v10, v8, s40")
    a("v_lshl_add_u32 v10, v9, 4, v10")
    a("v_lshlrev_b32 v11, 12, v8")
    a("v_lshl_add_u32 v11, v9, 4, v11")
    a("s_lshl_b32 s50, s50, 7")
    a("s_mul_i32 s52, s51, %d" % (64 * 3584))
    a("s_add_u32 s52, s52, s50")
    a("s_mul_i32 s53, s51, %d" % (56 * 4096))
    a("s_add_u32 s53, s53, s50")
    a("s_mov_b32 s42, 0")
    a("s_mov_b32 s43, -1")
    a("s_mov_b32 s46, 0xff800000")
    a(f"v_mov_b32 v{TM}, 0")
    def wreg(ks, mt):
        return (WR + (ks * 4 + mt) * 4) if ks < 7 else (240 + 4 * mt)
    def woreg(ks):
        its = []
        for mt in range(4):
            r = wreg(ks, mt)
            its.append([f"s_add_u32 s40, s44, {ks*28672+mt*1024}", f"buffer_load_dwordx4 v[{r}:{r+3}], v6, s[28:31], s40 offen"])
        return its
    def wolds(ks):
        its = []
        for mt in range(4):
            its.append([f"s_add_u32 s40, s45, {(ks-8)*28672+mt*1024}", f"s_add_u32 s41, s44, {ks*28672+mt*1024}", "s_mov_b32 m0, s40", "s_nop 0",
                        "buffer_load_dwordx4 v6, s[28:31], s41 offen lds"])
        return its
    def pf7_items(c):
        its = []
        for n, (m, j, r8) in enumerate(PF7[c]):
            if m == 0:
                its.append([f"s_add_u32 s40, s52, {j*1024 + r8*8*3584}", f"buffer_load_dwordx4 v[{104+4*n}:{107+4*n}], v10, s[20:23], s40 offen"])
            else:
                its.append([f"s_add_u32 s40, s53, {j*1024 + r8*8*4096}", f"buffer_load_dwordx4 v[{104+4*n}:{107+4*n}], v11, s[24:27], s40 offen"])
        return its
    uid = [0]
    queue = []
    def fill_queue(c):
        if c + 2 < 16:
            for it in kv_items(c + 2):
                queue.append((it, None, None))
        r, l = PF[c]
        its = []
        for ks in r: its += woreg(ks)
        for ks in l: its += wolds(ks)
        i7 = pf7_items(c)
        for i in range(max(len(its), len(i7))):
            queue.append((None, its[i] if i < len(its) else None, i7[i] if i < len(i7) else None))
    def slot(n=1):
        for _ in range(n):
            if not queue: return
            cm, a06, a7 = queue.pop(0)
            if cm:
                for l in cm: a(l)
            else:
                u = uid[0]; uid[0] += 1
                a("s_cmp_ge_u32 s32, 7")
                a(f"s_cbranch_scc1 K2_Q7_{u}")
                if a06:
                    for l in a06: a(l)
                a(f"s_branch K2_QJ_{u}")
                a.label(f"K2_Q7_{u}")
                if a7:
                    for l in a7: a(l)
                a.label(f"K2_QJ_{u}")
    def rdK(t):
        kb = KB[t & 1]; c = t >> 1; tl = t & 1
        off = (c & 3) * 8192 + tl * 2048
        a(f"ds_read_b128 v[{kb}:{kb+3}], v7 offset:{off}")
        a(f"ds_read_b128 v[{kb+4}:{kb+7}], v7 offset:{off+1024}")
    def rdV(t):
        c = t >> 1; tl = t & 1
        off = (c & 3) * 8192 + 4096 + tl * 2048
        a(f"ds_read_b128 v[{VB}:{VB+3}], v7 offset:{off}")
        a(f"ds_read_b128 v[{VB+4}:{VB+7}], v7 offset:{off+1024}")
    def mmS(t):
        kb = KB[t & 1]; s = S[t & 1]
        a(f"v_mfma_f32_32x32x16_bf16 v[{s}:{s+15}], v[{kb}:{kb+3}], v[{Q}:{Q+3}], 0")
        a(f"v_mfma_f32_32x32x16_bf16 v[{s}:{s+15}], v[{kb+4}:{kb+7}], v[{Q+4}:{Q+7}], v[{s}:{s+15}]")
    rare = []
    a("s_waitcnt vmcnt(0)")
    a("s_barrier")
    rdK(0)
    rdK(1)
    a("s_waitcnt lgkmcnt(2)")
    mmS(0)
    P2 = [P, 232]
    def boundary(md, c):
        if c > 0:
            if c + 1 < 16:
                a("s_cmp_ge_u32 s32, 7")
                a(f"s_cbranch_scc1 K2{md}_W7_{c}")
                a(f"s_waitcnt vmcnt({pf_count(c-1)})")
                a(f"s_branch K2{md}_WJ_{c}")
                a.label(f"K2{md}_W7_{c}")
                a(f"s_waitcnt vmcnt({len(PF7[c-1])})")
                a.label(f"K2{md}_WJ_{c}")
            if not os.environ.get("NOBAR"): a("s_barrier")
            if c in (4, 8): ts()
        assert not queue
        fill_queue(c)
    def tile_max_check(md, t, s):
        a(f"v_max3_f32 v{TM+1}, v{s}, v{s+1}, v{s+2}")
        a(f"v_max3_f32 v{TM+2}, v{s+3}, v{s+4}, v{s+5}")
        a(f"v_max3_f32 v{TM+1}, v{TM+1}, v{s+6}, v{s+7}")
        a(f"v_max3_f32 v{TM+2}, v{TM+2}, v{s+8}, v{s+9}")
        a(f"v_max3_f32 v{TM+1}, v{TM+1}, v{s+10}, v{s+11}")
        a(f"v_max3_f32 v{TM+2}, v{TM+2}, v{s+12}, v{s+13}")
        a(f"v_max3_f32 v{TM+1}, v{TM+1}, v{s+14}, v{s+15}")
        a(f"v_max_f32 v{TM+1}, v{TM+1}, v{TM+2}")
        a(f"v_cmp_lt_f32 vcc, s46, v{TM+1}")
        a(f"s_cbranch_vccnz K2{md}_RARE{t}")
        a.label(f"K2{md}_BACK{t}")
    def safe_loop():
        md = "S"
        for t in range(32):
            c = t >> 1; tl = t & 1
            if tl == 0:
                boundary(md, c)
                slot(2)
            rdV(t)
            has_next = t + 1 < 32
            if has_next:
                a("s_waitcnt lgkmcnt(2)")
                mmS(t + 1)
                if t + 2 < 32:
                    rdK(t + 2)
            else:
                a("s_nop 7")
            nk = 2 if t + 2 < 32 else 0
            s = S[t & 1]
            tile_max_check(md, t, s)
            rare.append((md, t, has_next))
            for i in range(16):
                a(f"v_exp_f32 v{s+i}, v{s+i}")
                if i in (3, 9, 15): slot(1)
            for i in range(8):
                a(f"v_cvt_pk_bf16_f32 v{P+i}, v{s+2*i}, v{s+2*i+1}")
            if tl == 1: slot(8)
            a(f"s_waitcnt lgkmcnt({nk})")
            cc = "0" if t == 0 else f"v[{O}:{O+15}]"
            a(f"v_mfma_f32_32x32x16_bf16 v[{O}:{O+15}], v[{VB}:{VB+3}], v[{P}:{P+3}], {cc}")
            a(f"v_mfma_f32_32x32x16_bf16 v[{O}:{O+15}], v[{VB+4}:{VB+7}], v[{P+4}:{P+7}], v[{O}:{O+15}]")
    def fast_loop():
        md = "F"
        for t in range(33):
            c = t >> 1; tl = t & 1
            real = t < 32
            if real and tl == 0:
                boundary(md, c)
                slot(2)
            if t > 0:
                rdV(t - 1)
            kb = KB[(t + 1) & 1]; sn = S[(t + 1) & 1]; s = S[t & 1]
            pp = P2[(t - 1) & 1]
            has_next = t + 1 < 32
            def ex(lo, hi):
                if not real: return
                for i in range(lo, hi):
                    if not os.environ.get("NOEXP"): a(f"v_exp_f32 v{s+i}, v{s+i}")
            if has_next:
                a(f"s_waitcnt lgkmcnt({2 if t > 0 else 0})")
                a(f"v_mfma_f32_32x32x16_bf16 v[{sn}:{sn+15}], v[{kb}:{kb+3}], v[{Q}:{Q+3}], 0")
            if t == 0:
                a("s_nop 15")
                tile_max_check(md, t, s)
                rare.append((md, t, False))
            ex(0, 4)
            if has_next:
                a(f"v_mfma_f32_32x32x16_bf16 v[{sn}:{sn+15}], v[{kb+4}:{kb+7}], v[{Q+4}:{Q+7}], v[{sn}:{sn+15}]")
            if real: slot(1)
            ex(4, 8)
            if t > 0:
                a("s_waitcnt lgkmcnt(0)")
                cc = "0" if t == 1 else f"v[{O}:{O+15}]"
                a(f"v_mfma_f32_32x32x16_bf16 v[{O}:{O+15}], v[{VB}:{VB+3}], v[{pp}:{pp+3}], {cc}")
            if real: slot(1)
            ex(8, 12)
            if t > 0:
                a(f"v_mfma_f32_32x32x16_bf16 v[{O}:{O+15}], v[{VB+4}:{VB+7}], v[{pp+4}:{pp+7}], v[{O}:{O+15}]")
            if t + 2 < 32:
                rdK(t + 2)
            if real: slot(1)
            ex(12, 16)
            if real:
                pc = P2[t & 1]
                for i in range(8):
                    if not os.environ.get("NOCVT"): a(f"v_cvt_pk_bf16_f32 v{pc+i}, v{s+2*i}, v{s+2*i+1}")
                if tl == 1: slot(8)
    def main_loop(md):
        if md == "F": fast_loop()
        else: safe_loop()
    a(f"v_mov_b32 v{TM+8}, 0")
    for r in range(8):
        a(f"v_lshlrev_b32 v{TM+1}, 16, v{Q+r}")
        a(f"v_and_b32 v{TM+2}, 0xffff0000, v{Q+r}")
        a(f"v_fmac_f32 v{TM+8}, v{TM+1}, v{TM+1}")
        a(f"v_fmac_f32 v{TM+8}, v{TM+2}, v{TM+2}")
    a(f"v_xor_b32 v{TM+2}, 32, v2")
    a(f"v_lshlrev_b32 v{TM+2}, 2, v{TM+2}")
    a(f"ds_bpermute_b32 v{TM+3}, v{TM+2}, v{TM+8}")
    a(f"v_mov_b32 v{TM+9}, v{TM+10}")
    for sh in (1, 2, 4, 8):
        a("s_nop 1")
        a(f"v_mov_b32 v{TM+4}, v{TM+9}")
        a("s_nop 1")
        a(f"v_mov_b32 v{TM+4}, v{TM+9} row_shr:{sh} row_mask:0xf bank_mask:0xf")
        a("s_nop 1")
        a(f"v_max_f32 v{TM+9}, v{TM+9}, v{TM+4}")
    a("s_nop 1")
    a(f"v_readlane_b32 s54, v{TM+9}, 15")
    a(f"v_readlane_b32 s55, v{TM+9}, 31")
    a(f"v_readlane_b32 s56, v{TM+9}, 47")
    a(f"v_readlane_b32 s57, v{TM+9}, 63")
    a("s_waitcnt lgkmcnt(0)")
    a(f"v_add_f32 v{TM+8}, v{TM+8}, v{TM+3}")
    a(f"v_mov_b32 v{TM+9}, s54")
    a(f"v_max_f32 v{TM+9}, s55, v{TM+9}")
    a(f"v_max_f32 v{TM+9}, s56, v{TM+9}")
    a(f"v_max_f32 v{TM+9}, s57, v{TM+9}")
    a(f"v_mul_f32 v{TM+8}, v{TM+8}, v{TM+9}")
    a(f"v_mov_b32 v{TM+9}, 0x45100000")
    a(f"v_cmp_nlt_f32 vcc, v{TM+8}, v{TM+9}")
    a("s_cbranch_vccnz K2_SAFE")
    main_loop("F")
    a("s_branch K2_LOOPEND")
    a.label("K2_SAFE")
    main_loop("S")
    a.label("K2_LOOPEND")
    ts()
    LATE = list(range(24, 64)) + list(range(80, 104))
    OP = 0; OPP = 144
    OA = 36864; OAP = 912
    HT = 0; HTP = 1808
    ST = 16384
    MXB = MISC
    a("s_cmp_ge_u32 s32, 7")
    a("s_cbranch_scc1 K2_NOLATE")
    for ks in range(11, 14):
        for mt in range(4):
            r = LATE[((ks - 11) * 4 + mt) * 4]
            a(f"s_add_u32 s40, s44, {ks*28672+mt*1024}")
            a(f"buffer_load_dwordx4 v[{r}:{r+3}], v6, s[28:31], s40 offen")
    a.label("K2_NOLATE")
    a("s_barrier")
    a("v_and_b32 v10, 15, v2")
    a("v_lshrrev_b32 v11, 4, v2")
    a("s_movk_i32 s40, 896")
    a("v_mul_lo_u32 v12, v10, s40")
    a("v_lshl_add_u32 v12, v11, 3, v12")
    a("s_mul_i32 s40, s2, 7168")
    a("s_lshl_b32 s41, s32, 7")
    a("s_add_u32 s40, s40, s41")
    a("v_cmp_gt_u32 vcc, 8, v10")
    a("v_mov_b32 v13, 0x7fffffff")
    a("s_nop 0")
    a("v_cndmask_b32 v12, v13, v12, vcc")
    for mt in range(4):
        a(f"buffer_load_dwordx2 v[{232+2*mt}:{233+2*mt}], v12, s[16:19], s40 offen offset:{32*mt}")
    a("v_and_b32 v14, 31, v2")
    a(f"v_mul_u32_u24 v14, {OPP}, v14")
    a("v_lshl_add_u32 v14, v5, 4, v14")
    a(f"s_mul_i32 s40, s32, {32*OPP}")
    a("v_add_u32 v14, s40, v14")
    for g4 in range(4):
        a(f"ds_write_b128 v14, v[{O+4*g4}:{O+4*g4+3}] offset:{OP+32*g4}")
    a("v_lshlrev_b32 v9, 2, v2")
    a("s_lshl_b32 s40, s32, 8")
    a(f"s_add_u32 s40, s40, {MXB}")
    a("v_add_u32 v9, s40, v9")
    a(f"ds_write_b32 v9, v{TM}")
    a("s_waitcnt lgkmcnt(0)")
    a("s_barrier")
    a("v_lshrrev_b32 v14, 2, v0")
    a("v_and_b32 v15, 3, v0")
    a(f"v_mul_u32_u24 v8, {OPP}, v14")
    a("v_lshl_add_u32 v9, v15, 5, v8")
    M0 = 216
    a(f"ds_read_b128 v[64:67], v9 offset:{OP}")
    a(f"ds_read_b128 v[68:71], v9 offset:{OP+16}")
    a(f"ds_read_b128 v[72:75], v9 offset:{OP+128*OPP}")
    a(f"ds_read_b128 v[76:79], v9 offset:{OP+128*OPP+16}")
    a(f"ds_read_b32 v217, v8 offset:{OP+112}")
    a(f"ds_read_b32 v218, v8 offset:{OP+128*OPP+112}")
    a("v_lshrrev_b32 v13, 5, v14")
    a("v_lshlrev_b32 v13, 8, v13")
    a("v_and_b32 v8, 31, v14")
    a("v_lshl_add_u32 v13, v8, 2, v13")
    a(f"v_add_u32 v13, {MXB}, v13")
    a(f"ds_read_b32 v219, v13")
    a(f"ds_read_b32 v220, v13 offset:1024")
    a("s_waitcnt lgkmcnt(0)")
    a("v_max_f32 v221, v219, v220")
    a("v_sub_f32 v219, v219, v221")
    a("v_sub_f32 v220, v220, v221")
    a("v_exp_f32 v219, v219")
    a("v_exp_f32 v220, v220")
    a("s_nop 0")
    a("v_mul_f32 v217, v217, v219")
    a("v_fmac_f32 v217, v218, v220")
    a("v_rcp_f32 v217, v217")
    a("s_nop 0")
    a("v_mul_f32 v219, v219, v217")
    a("v_mul_f32 v220, v220, v217")
    for i in range(8):
        a(f"v_mul_f32 v{64+i}, v{64+i}, v219")
    for i in range(8):
        a(f"v_fmac_f32 v{64+i}, v{72+i}, v220")
    for i in range(4):
        a(f"v_cvt_pk_bf16_f32 v{64+i}, v{64+2*i}, v{65+2*i}")
    a("v_and_b32 v8, 7, v14")
    a(f"v_mul_u32_u24 v8, {OAP}, v8")
    a("v_lshrrev_b32 v9, 3, v14")
    a("v_mul_u32_u24 v9, 56, v9")
    a("v_add_u32 v8, v8, v9")
    a("v_lshl_add_u32 v8, v15, 4, v8")
    a(f"ds_write_b64 v8, v[64:65] offset:{OA}")
    a("v_cmp_gt_u32 vcc, 3, v15")
    a("s_and_saveexec_b64 s[46:47], vcc")
    a(f"ds_write_b64 v8, v[66:67] offset:{OA+8}")
    a("s_mov_b64 exec, s[46:47]")
    a("s_waitcnt vmcnt(0) lgkmcnt(0)")
    a("s_barrier")
    ts()
    a("s_cmp_ge_u32 s32, 7")
    a("s_cbranch_scc1 K2_HS")
    a(f"v_mul_u32_u24 v8, {OAP}, v10")
    a("v_lshl_add_u32 v8, v11, 4, v8")
    a("v_add_u32 v9, s45, v6")
    ACC = 64
    BF = [216, 220]
    AF = 224
    def rdB(ks):
        b = BF[ks & 1]
        a(f"ds_read_b128 v[{b}:{b+3}], v8 offset:{OA+ks*64}")
    rdB(0)
    for ks in range(14):
        nl = 0
        if ks + 1 < 14:
            rdB(ks + 1); nl += 1
        b = BF[ks & 1]
        for mt in range(4):
            c = "0" if ks == 0 else f"v[{ACC+4*mt}:{ACC+4*mt+3}]"
            if ks < 8:
                r = wreg(ks, mt)
                if mt == 0: a(f"s_waitcnt lgkmcnt({nl})")
            elif ks < 11:
                r = AF + 4 * (mt & 1)
                a(f"ds_read_b128 v[{r}:{r+3}], v9 offset:{(ks-8)*28672+mt*1024}")
                a("s_waitcnt lgkmcnt(0)")
            else:
                r = LATE[((ks - 11) * 4 + mt) * 4]
                if mt == 0: a(f"s_waitcnt lgkmcnt({nl})")
            a(f"v_mfma_f32_16x16x32_bf16 v[{ACC+4*mt}:{ACC+4*mt+3}], v[{r}:{r+3}], v[{b}:{b+3}], {c}")
    a("s_nop 15")
    ts()
    for mt in range(4):
        b = ACC + 4 * mt
        a(f"v_cvt_pk_bf16_f32 v24, v{b}, v{b+1}")
        a(f"v_cvt_pk_bf16_f32 v25, v{b+2}, v{b+3}")
        a(f"v_lshlrev_b32 v26, 16, v24")
        a(f"v_and_b32 v27, 0xffff0000, v24")
        a(f"v_lshlrev_b32 v28, 16, v25")
        a(f"v_and_b32 v29, 0xffff0000, v25")
        xr = 232 + 2 * mt
        a(f"v_lshlrev_b32 v30, 16, v{xr}")
        a(f"v_and_b32 v31, 0xffff0000, v{xr}")
        a(f"v_lshlrev_b32 v32, 16, v{xr+1}")
        a(f"v_and_b32 v33, 0xffff0000, v{xr+1}")
        for i in range(4):
            a(f"v_add_f32 v{26+i}, v{26+i}, v{30+i}")
        a(f"v_cvt_pk_bf16_f32 v24, v26, v27")
        a(f"v_cvt_pk_bf16_f32 v25, v28, v29")
        a(f"v_lshlrev_b32 v{b}, 16, v24")
        a(f"v_and_b32 v{b+1}, 0xffff0000, v24")
        a(f"v_lshlrev_b32 v{b+2}, 16, v25")
        a(f"v_and_b32 v{b+3}, 0xffff0000, v25")
    a(f"v_mul_u32_u24 v24, {HTP}, v10")
    a("v_lshl_add_u32 v24, v11, 4, v24")
    a("s_lshl_b32 s40, s32, 8")
    a("v_add_u32 v24, s40, v24")
    a("v_cmp_gt_u32 vcc, 8, v10")
    a("s_and_saveexec_b64 s[46:47], vcc")
    for mt in range(4):
        a(f"ds_write_b128 v24, v[{ACC+4*mt}:{ACC+4*mt+3}] offset:{HT+64*mt}")
    a("s_mov_b64 exec, s[46:47]")
    a.label("K2_HS")
    a("s_waitcnt lgkmcnt(0)")
    a("s_barrier")
    a("v_lshlrev_b32 v24, 5, v2")
    a(f"s_mul_i32 s40, s32, {HTP}")
    a("v_add_u32 v24, s40, v24")
    for i in range(8):
        a(f"v_mov_b32 v{32+i}, 0")
    a("v_cmp_gt_u32 vcc, 56, v2")
    a("s_and_saveexec_b64 s[46:47], vcc")
    a(f"ds_read_b128 v[32:35], v24 offset:{HT}")
    a(f"ds_read_b128 v[36:39], v24 offset:{HT+16}")
    a("s_waitcnt lgkmcnt(0)")
    a("s_mov_b64 exec, s[46:47]")
    a("v_add_f32 v40, v32, v33")
    for i in range(2, 8):
        a(f"v_add_f32 v40, v40, v{32+i}")
    def wave_sum(v, s):
        for sh in (1, 2, 4, 8):
            a("s_nop 1")
            a(f"v_mov_b32 v41, 0")
            a("s_nop 1")
            a(f"v_mov_b32 v41, v{v} row_shr:{sh} row_mask:0xf bank_mask:0xf")
            a("s_nop 1")
            a(f"v_add_f32 v{v}, v{v}, v41")
        a("s_nop 1")
        a(f"v_readlane_b32 s{s}, v{v}, 15")
        a(f"v_readlane_b32 s{s+1}, v{v}, 31")
        a(f"v_readlane_b32 s{s+2}, v{v}, 47")
        a(f"v_readlane_b32 s{s+3}, v{v}, 63")
        a("s_nop 3")
        a(f"v_mov_b32 v41, s{s}")
        a(f"v_add_f32 v41, s{s+1}, v41")
        a(f"v_add_f32 v41, s{s+2}, v41")
        a(f"v_add_f32 v41, s{s+3}, v41")
    wave_sum(40, 48)
    a("v_mul_f32 v42, 0x3b124925, v41")
    a("v_mov_b32 v40, 0")
    a("s_and_saveexec_b64 s[46:47], vcc")
    for i in range(8):
        a(f"v_sub_f32 v{44+i}, v{32+i}, v42")
    a("v_mul_f32 v40, v44, v44")
    for i in range(1, 8):
        a(f"v_fmac_f32 v40, v{44+i}, v{44+i}")
    for i in range(4):
        a(f"v_cvt_pk_bf16_f32 v{52+i}, v{32+2*i}, v{33+2*i}")
    a("v_lshlrev_b32 v25, 4, v2")
    a("s_lshl_b32 s40, s2, 3")
    a("s_add_u32 s40, s40, s32")
    a("s_mul_i32 s40, s40, 896")
    a(f"s_add_u32 s40, s40, {WS_H}")
    a("buffer_store_dwordx4 v[52:55], v25, s[28:31], s40 offen")
    a("s_mov_b64 exec, s[46:47]")
    wave_sum(40, 48)
    a("v_mov_b32 v43, 0x3727c5ac")
    a("v_fmac_f32 v43, 0x3b124925, v41")
    a("v_rsq_f32 v43, v43")
    a("s_lshl_b32 s40, s32, 3")
    a(f"s_add_u32 s40, s40, {ST}")
    a("v_mov_b32 v25, s40")
    a("v_cmp_eq_u32 vcc, 0, v2")
    a("s_and_saveexec_b64 s[46:47], vcc")
    a("ds_write_b64 v25, v[42:43]")
    a("s_mov_b64 exec, s[46:47]")
    a("s_waitcnt lgkmcnt(0)")
    a("s_barrier")
    a("v_cmp_gt_u32 vcc, 448, v0")
    a("s_and_saveexec_b64 s[46:47], vcc")
    a("s_cbranch_execz K2_DONE")
    a("v_lshlrev_b32 v24, 2, v0")
    for t in range(8):
        a(f"ds_read_b32 v{32+t}, v24 offset:{HT+t*HTP}")
    a(f"v_mov_b32 v25, {ST}")
    for t in range(4):
        a(f"ds_read_b128 v[{48+4*t}:{51+4*t}], v25 offset:{16*t}")
    a("v_lshrrev_b32 v26, 6, v0")
    a("v_and_b32 v27, 63, v0")
    a("v_lshlrev_b32 v26, 18, v26")
    a("v_lshl_add_u32 v26, v27, 7, v26")
    a("v_bfe_u32 v27, v27, 1, 3")
    a("s_and_b32 s40, s2, 7")
    a("v_xor_b32 v27, s40, v27")
    a("v_lshl_add_u32 v26, v27, 4, v26")
    a("s_lshr_b32 s40, s2, 3")
    a("s_lshl_b32 s40, s40, 13")
    a(f"s_add_u32 s40, s40, {WS_HNT}")
    a("s_waitcnt lgkmcnt(0)")
    for t in range(8):
        a(f"v_sub_f32 v{32+t}, v{32+t}, v{48+2*t}")
        a(f"v_mul_f32 v{32+t}, v{32+t}, v{49+2*t}")
    for i in range(4):
        a(f"v_cvt_pk_bf16_f32 v{40+i}, v{32+2*i}, v{33+2*i}")
    a("buffer_store_dwordx4 v[40:43], v26, s[28:31], s40 offen")
    ts()
    rt(1)
    a.label("K2_DONE")
    a("s_endpgm")
    for md, t, has_next in rare:
        s = S[t & 1]; sn = S[(t + 1) & 1]
        a.label(f"K2{md}_RARE{t}")
        a(f"v_xor_b32 v{TM+2}, 32, v2")
        a(f"v_lshlrev_b32 v{TM+2}, 2, v{TM+2}")
        a(f"ds_bpermute_b32 v{TM+3}, v{TM+2}, v{TM+1}")
        a("s_waitcnt lgkmcnt(0)")
        a(f"v_max_f32 v{TM+1}, v{TM+1}, v{TM+3}")
        a(f"v_cmp_lt_f32 vcc, s46, v{TM+1}")
        a("s_nop 1")
        a(f"v_cndmask_b32 v{TM+1}, 0, v{TM+1}, vcc")
        a(f"v_add_f32 v{TM+1}, v{TM}, v{TM+1}")
        a(f"v_sub_f32 v{TM+2}, 0, v{TM+1}")
        a(f"v_cvt_pk_bf16_f32 v{TM+3}, v{TM+2}, v{TM+2}")
        a(f"v_lshlrev_b32 v{TM+4}, 16, v{TM+3}")
        a(f"v_sub_f32 v{TM+5}, v{TM+2}, v{TM+4}")
        a(f"v_cvt_pk_bf16_f32 v{TM+5}, v{TM+5}, v{TM+5}")
        a(f"v_lshlrev_b32 v{TM+6}, 16, v{TM+5}")
        a(f"v_add_f32 v{TM+4}, v{TM+4}, v{TM+6}")
        a(f"v_and_b32 v{TM+3}, 0xffff, v{TM+3}")
        a(f"v_lshl_or_b32 v{TM+3}, v{TM+5}, 16, v{TM+3}")
        a(f"v_cndmask_b32 v{Q+6}, v{Q+6}, v{TM+3}, s[42:43]")
        a(f"v_add_f32 v{TM+5}, v{TM}, v{TM+4}")
        a(f"v_sub_f32 v{TM}, 0, v{TM+4}")
        for i in range(16):
            a(f"v_add_f32 v{s+i}, v{s+i}, v{TM+5}")
        if has_next:
            a("s_nop 7")
            for i in range(16):
                a(f"v_add_f32 v{sn+i}, v{sn+i}, v{TM+5}")
        if t > 0:
            a(f"v_exp_f32 v{TM+5}, v{TM+5}")
            a("s_nop 7")
            a("s_nop 7")
            for i in range(16):
                a(f"v_mul_f32 v{O+i}, v{O+i}, v{TM+5}")
        a(f"s_mov_b32 s46, 0x{thr_bits:08x}")
        a("s_nop 1")
        a(f"s_branch K2{md}_BACK{t}")
    kernel_desc(a, name, 256)
    return name, (256, 1, 1), (512, 1, 1), LDS

PF = {c: ([], []) for c in range(16)}
for _i, _c in enumerate((0, 2, 4, 6, 8, 10, 12, 13)): PF[_c] = ([_i], [])
for _i, _c in enumerate((1, 3, 5)): PF[_c] = ([], [8 + _i])
if os.environ.get('NOPF'): PF = {c: ([], []) for c in range(16)}
def pf_count(c):
    r, l = PF[c]
    return 4 * (len(r) + len(l))
_all = [(0, j, r8) for j in range(4) for r8 in range(8)] + [(1, j, r8) for j in range(4) for r8 in range(7)]
PF7 = {c: _all[c*5:(c+1)*5] for c in range(16)}
if os.environ.get('NOPF7'): PF7 = {c: [] for c in range(16)}
```

```python
import sys

NAME = "sequential_preLN__grouped_kv_mqa__mixer_token_mlp__prompt"

HEADER = """; Kernarg layout for this problem (104 bytes, ptrs only, base s[0:1]):
"""

WS_Q = 0
WS_K = 2 << 20
WS_V = WS_K + (128 << 10)
WS_H = 3 << 20
WS_HNT = 5 << 20
WS_U = 7 << 20
WS_WOF = 9 << 20
WS_KN = 10 << 20
WS_SIZE = 268435456


class Asm:
    def __init__(self):
        self.lines = []
    def __call__(self, s):
        self.lines.append("    " + s)
    def label(self, s):
        self.lines.append(s + ":")
    def raw(self, s):
        self.lines.append(s)
    def text(self):
        return "\n".join(self.lines) + "\n"


def kernel_begin(a, name):
    a.raw(".text")
    a.raw(f".globl {name}")
    a.raw(".p2align 8")
    a.raw(f".type {name},@function")
    a.label(name)


def kernel_desc(a, name, vgpr, sgpr=102, accum=None):
    if accum is None:
        accum = (vgpr + 3) // 4 * 4
    a.raw('.section .rodata,"a"')
    a.raw(".p2align 6")
    a.raw(f".amdhsa_kernel {name}")
    a.raw(f"  .amdhsa_next_free_vgpr {vgpr}")
    a.raw(f"  .amdhsa_next_free_sgpr {sgpr}")
    a.raw(f"  .amdhsa_accum_offset {accum}")
    a.raw("  .amdhsa_group_segment_fixed_size 0")
    a.raw("  .amdhsa_kernarg_size 104")
    a.raw("  .amdhsa_user_sgpr_count 2")
    a.raw("  .amdhsa_user_sgpr_kernarg_segment_ptr 1")
    a.raw("  .amdhsa_system_sgpr_workgroup_id_x 1")
    a.raw(".end_amdhsa_kernel")


def srd(a, d, b, nbytes):
    a(f"s_mov_b32 s{d}, s{b}")
    a(f"s_and_b32 s{d+1}, s{b+1}, 0xffff")
    a(f"s_mov_b32 s{d+2}, 0x{nbytes:x}")
    a(f"s_mov_b32 s{d+3}, 0x00020000")


def gen_k1(a):
    name = "k1_qkv_kernel"
    kernel_begin(a, name)
    XN = 0
    XN_PITCH = 912
    WT = 29184
    KV = WT + 102400
    LDS = KV + 28672 + 256
    a("s_cmp_ge_u32 s2, 256")
    a("s_cbranch_scc1 K1_DONE")
    a("s_load_dwordx4 s[4:7], s[0:1], 0")
    a("s_load_dwordx4 s[8:11], s[0:1], 16")
    a("s_load_dwordx2 s[12:13], s[0:1], 96")
    a("s_lshr_b32 s14, s2, 2")
    a("s_and_b32 s15, s2, 3")
    a("v_lshrrev_b32 v1, 6, v0")
    a("v_and_b32 v2, 63, v0")
    a("s_nop 0")
    a("v_readfirstlane_b32 s32, v1")
    a("s_waitcnt lgkmcnt(0)")
    srd(a, 16, 4, 2048 * 896)
    srd(a, 20, 6, 448 * 896)
    a("s_cmp_eq_u32 s15, 0")
    a("s_cselect_b32 s24, s8, s10")
    a("s_cselect_b32 s25, s9, s11")
    a("s_and_b32 s25, s25, 0xffff")
    a("s_mov_b32 s26, 25088")
    a("s_mov_b32 s27, 0x00020000")
    srd(a, 28, 12, WS_SIZE)
    import os
    TS = os.environ.get("TS")
    tsn = [0]
    if TS:
        a("s_load_dwordx2 s[70:71], s[0:1], 88")
        a("s_waitcnt lgkmcnt(0)")
        srd(a, 72, 70, 256)
    def ts():
        if not TS: return
        i = tsn[0]; tsn[0] += 1
        a("s_memtime s[76:77]")
        a("s_waitcnt lgkmcnt(0)")
        a("v_mov_b32 v120, s76")
        a("s_cmp_eq_u32 s2, %s" % TS)
        a(f"s_cbranch_scc0 K1_TS{i}")
        a("s_cmp_eq_u32 s32, 0")
        a(f"s_cbranch_scc0 K1_TS{i}")
        a(f"v_mov_b32 v121, {4*i}")
        a("buffer_store_dword v120, v121, s[72:75], 0 offen")
        a.label(f"K1_TS{i}")
    ts()
    a("s_cmp_ge_u32 s32, 4")
    a("s_cbranch_scc1 K1_SKIPX")
    a("v_lshrrev_b32 v3, 3, v0")
    a("v_and_b32 v4, 7, v0")
    a("s_lshl_b32 s33, s14, 5")
    a("v_add_u32 v5, s33, v3")
    a("s_movk_i32 s34, 896")
    a("v_mul_lo_u32 v5, v5, s34")
    a("v_lshl_add_u32 v5, v4, 4, v5")
    for i in range(7):
        a(f"buffer_load_dwordx4 v[{32+4*i}:{35+4*i}], v5, s[16:19], 0 offen offset:{128*i}")
    a.label("K1_SKIPX")
    a("s_cmp_lt_u32 s32, 4")
    a("s_cbranch_scc1 K1_SKIPKV")
    a("s_sub_u32 s39, s32, 4")
    a("s_lshl_b32 s35, s39, 6")
    a("v_add_u32 v6, s35, v2")
    a("s_mul_i32 s36, s15, 224")
    a("s_mov_b32 s37, 37450")
    a(f"s_lshl_b32 s38, s39, 10")
    a(f"s_add_u32 s38, s38, {WT}")
    for it in range(25):
        a("v_mul_u32_u24 v7, s37, v6")
        a("v_lshrrev_b32 v7, 19, v7")
        a("v_mul_u32_u24 v7, 672, v7")
        a("v_lshl_add_u32 v7, v6, 4, v7")
        a("s_mov_b32 m0, s38")
        a("s_add_u32 s38, s38, 4096")
        a("buffer_load_dwordx4 v7, s[20:23], s36 offen lds")
        if it != 24:
            a("v_add_u32 v6, 256, v6")
    a("s_cmp_ge_u32 s15, 2")
    a("s_cbranch_scc1 K1_SKIPKV")
    a("v_add_u32 v7, s35, v2")
    a("v_lshlrev_b32 v7, 4, v7")
    a("s_lshl_b32 s38, s39, 10")
    a(f"s_add_u32 s38, s38, {KV}")
    for it in range(7):
        a("s_mov_b32 m0, s38")
        a("s_add_u32 s38, s38, 4096")
        a(f"buffer_load_dwordx4 v7, s[24:27], 0 offen lds")
        if it != 6:
            a("v_add_u32 v7, 4096, v7")
    a.label("K1_SKIPKV")
    a("s_cmp_ge_u32 s32, 4")
    a("s_cbranch_scc1 K1_SKIPLN")
    a("s_waitcnt vmcnt(0)")
    ts()
    for i in range(28):
        a(f"v_lshlrev_b32 v{64+2*i}, 16, v{32+i}")
        a(f"v_and_b32 v{65+2*i}, 0xffff0000, v{32+i}")
    a("v_add_f32 v8, v64, v65")
    a("v_add_f32 v9, v66, v67")
    for i in range(2, 28):
        a(f"v_add_f32 v{8+(i&1)}, v{8+(i&1)}, v{64+2*i}")
        a(f"v_add_f32 v{8+(i&1)}, v{8+(i&1)}, v{65+2*i}")
    a("v_add_f32 v8, v8, v9")

    def red8(v):
        a("s_nop 1")
        a(f"v_add_f32 v{v}, v{v}, v{v} quad_perm:[1,0,3,2] row_mask:0xf bank_mask:0xf")
        a("s_nop 1")
        a(f"v_add_f32 v{v}, v{v}, v{v} quad_perm:[2,3,0,1] row_mask:0xf bank_mask:0xf")
        a("s_nop 1")
        a(f"v_add_f32 v{v}, v{v}, v{v} row_half_mirror row_mask:0xf bank_mask:0xf")
    red8(8)
    a("v_mul_f32 v8, 0x3b124925, v8")
    for i in range(56):
        a(f"v_sub_f32 v{64+i}, v{64+i}, v8")
    a("v_mul_f32 v9, v64, v64")
    a("v_mul_f32 v10, v65, v65")
    for i in range(2, 56):
        a(f"v_fmac_f32 v{9+(i&1)}, v{64+i}, v{64+i}")
    a("v_add_f32 v9, v9, v10")
    red8(9)
    a("v_mov_b32 v10, 0x3727c5ac")
    a("v_fmac_f32 v10, 0x3b124925, v9")
    a("v_rsq_f32 v10, v10")
    a("s_nop 0")
    for i in range(56):
        a(f"v_mul_f32 v{64+i}, v{64+i}, v10")
    for i in range(28):
        a(f"v_cvt_pk_bf16_f32 v{32+i}, v{64+2*i}, v{65+2*i}")
    a(f"v_mul_u32_u24 v11, {XN_PITCH}, v3")
    a("v_lshl_add_u32 v11, v4, 4, v11")
    for i in range(7):
        a(f"ds_write_b128 v11, v[{32+4*i}:{35+4*i}] offset:{XN+128*i}")
    a.label("K1_SKIPLN")
    ts()
    a("s_waitcnt vmcnt(0) lgkmcnt(0)")
    a("s_barrier")
    ts()
    a("v_and_b32 v12, 31, v2")
    a(f"v_mul_u32_u24 v12, {XN_PITCH}, v12")
    a("v_lshrrev_b32 v13, 5, v2")
    a("v_lshl_add_u32 v12, v13, 4, v12")
    a("v_bfe_u32 v14, v2, 2, 2")
    a("v_lshl_add_u32 v14, v13, 3, v14")
    a("v_bfe_u32 v15, v2, 4, 1")
    a("v_and_b32 v16, 3, v2")
    a("v_lshlrev_b32 v16, 3, v16")
    a("v_lshl_add_u32 v15, v15, 5, v16")
    a("s_cmp_ge_u32 s32, 5")
    a("s_cbranch_scc1 K1_DONE")
    a("s_cmp_ge_u32 s32, 4")
    a("s_cbranch_scc1 K1_KV")

    def mm_loop(pitch, base_v, swap):
        half = 14
        D = 4
        a(f"v_add_u32 v17, {half*16*pitch}, v{base_v}")
        def issue(k):
            wr = 80 + 8 * (k % (D + 1))
            b = base_v if k < half else 17
            kk = k if k < half else k - half
            a(f"ds_read_b64_tr_b16 v[{wr}:{wr+1}], v{b} offset:{kk*16*pitch}")
            a(f"ds_read_b64_tr_b16 v[{wr+2}:{wr+3}], v{b} offset:{kk*16*pitch+4*pitch}")
            a(f"ds_read_b128 v[{wr+4}:{wr+7}], v12 offset:{XN+k*32}")
        for k in range(D):
            issue(k)
        for k in range(28):
            if k + D < 28:
                issue(k + D)
            inflight = min(28, k + D + 1) - (k + 1)
            a(f"s_waitcnt lgkmcnt({3*inflight})")
            wr = 80 + 8 * (k % (D + 1))
            c = "0" if k == 0 else "v[64:79]"
            if not swap:
                a(f"v_mfma_f32_32x32x16_bf16 v[64:79], v[{wr}:{wr+3}], v[{wr+4}:{wr+7}], {c}")
            else:
                a(f"v_mfma_f32_32x32x16_bf16 v[64:79], v[{wr+4}:{wr+7}], v[{wr}:{wr+3}], {c}")
        a("s_nop 15")

    a("v_mul_u32_u24 v18, 224, v14")
    a("v_add_u32 v18, v18, v15")
    a("s_mul_i32 s33, s32, 56")
    a(f"s_add_u32 s33, s33, {WT}")
    a("v_add_u32 v18, s33, v18")
    mm_loop(224, 18, False)
    ts()
    a("s_mov_b32 s40, 0")
    a("s_mov_b32 s41, -1")
    for r in range(16):
        a(f"v_mul_f32 v{64+r}, 0x3e8b97f6, v{64+r}")
    for r in range(12, 16):
        a(f"v_cndmask_b32 v{64+r}, v{64+r}, 0, s[40:41]")
    for p in range(8):
        a(f"v_cvt_pk_bf16_f32 v{32+p}, v{64+2*p}, v{65+2*p}")
    a("v_and_b32 v20, 31, v2")
    a("v_lshlrev_b32 v20, 10, v20")
    a("v_lshl_add_u32 v20, v13, 3, v20")
    a("s_lshl_b32 s33, s14, 15")
    a("s_lshl_b32 s34, s15, 8")
    a("s_add_u32 s33, s33, s34")
    a("s_lshl_b32 s34, s32, 6")
    a("s_add_u32 s33, s33, s34")
    a(f"s_add_u32 s33, s33, {WS_Q}")
    for g in range(4):
        a(f"buffer_store_dwordx2 v[{32+2*g}:{33+2*g}], v20, s[28:31], s33 offen offset:{16*g}")
    ts()
    a("s_branch K1_DONE")
    a.label("K1_KV")
    a("s_cmp_ge_u32 s15, 2")
    a("s_cbranch_scc1 K1_WOF")
    a("v_mul_u32_u24 v18, 56, v14")
    a("v_add_u32 v18, v18, v15")
    a(f"v_add_u32 v18, {KV}, v18")
    a("s_cmp_eq_u32 s15, 1")
    a("s_cbranch_scc1 K1_V")
    mm_loop(56, 18, False)
    for p in range(8):
        a(f"v_cvt_pk_bf16_f32 v{32+p}, v{64+2*p}, v{65+2*p}")
    a("s_mov_b32 s40, 0")
    a("s_mov_b32 s41, -1")
    for r in range(12, 16):
        a(f"v_cndmask_b32 v{64+r}, v{64+r}, 0, s[40:41]")
    a("v_mul_f32 v44, v64, v64")
    for r in range(1, 16):
        a(f"v_fmac_f32 v44, v{64+r}, v{64+r}")
    a("v_xor_b32 v45, 32, v2")
    a("v_lshlrev_b32 v45, 2, v45")
    a("ds_bpermute_b32 v46, v45, v44")
    a("s_waitcnt lgkmcnt(0)")
    a("v_add_f32 v44, v44, v46")
    for sh in (1, 2, 4, 8):
        a("s_nop 1")
        a(f"v_mov_b32 v46, v44")
        a("s_nop 1")
        a(f"v_mov_b32 v46, v44 row_shr:{sh} row_mask:0xf bank_mask:0xf")
        a("s_nop 1")
        a("v_max_f32 v44, v44, v46")
    a("s_nop 1")
    a("v_readlane_b32 s44, v44, 15")
    a("v_readlane_b32 s45, v44, 31")
    a("s_nop 3")
    a("v_mov_b32 v46, s44")
    a("v_max_f32 v46, s45, v46")
    a("v_mov_b32 v45, 0")
    a("s_lshl_b32 s44, s14, 2")
    a(f"s_add_u32 s44, s44, {WS_KN}")
    a("v_cmp_eq_u32 vcc, 0, v2")
    a("s_and_saveexec_b64 s[46:47], vcc")
    a("buffer_store_dword v46, v45, s[28:31], s44 offen")
    a("s_mov_b64 exec, s[46:47]")
    a("v_mov_b32 v21, 0x3f803f80")
    a("v_cndmask_b32 v38, v38, v21, s[40:41]")
    a("v_cndmask_b32 v39, v39, 0, s[40:41]")
    a("v_and_b32 v20, 31, v2")
    a("v_lshlrev_b32 v20, 4, v20")
    a("v_lshl_add_u32 v20, v13, 3, v20")
    a("s_lshl_b32 s33, s14, 11")
    a(f"s_add_u32 s33, s33, {WS_K}")
    for g in range(4):
        a(f"buffer_store_dwordx2 v[{32+2*g}:{33+2*g}], v20, s[28:31], s33 offen offset:{(g>>1)*1024+(g&1)*512}")
    a("s_branch K1_DONE")
    a.label("K1_V")
    mm_loop(56, 18, True)
    a("v_and_b32 v20, 31, v2")
    a("v_cmp_eq_u32 s[40:41], 28, v20")
    a("v_cmp_lt_u32 s[42:43], 28, v20")
    a("s_nop 1")
    for r in range(16):
        a(f"v_cndmask_b32 v{64+r}, v{64+r}, 1.0, s[40:41]")
        a(f"v_cndmask_b32 v{64+r}, v{64+r}, 0, s[42:43]")
    for p in range(8):
        a(f"v_cvt_pk_bf16_f32 v{32+p}, v{64+2*p}, v{65+2*p}")
    a("v_lshlrev_b32 v20, 4, v2")
    a("s_lshl_b32 s33, s14, 11")
    a(f"s_add_u32 s33, s33, {WS_V}")
    a("buffer_store_dwordx4 v[32:35], v20, s[28:31], s33 offen")
    a("buffer_store_dwordx4 v[36:39], v20, s[28:31], s33 offen offset:1024")
    a("s_branch K1_DONE")
    a.label("K1_WOF")
    a("s_load_dwordx2 s[4:5], s[0:1], 32")
    a("s_waitcnt lgkmcnt(0)")
    srd(a, 16, 4, 448 * 896)
    a("v_lshrrev_b32 v20, 4, v2")
    a("v_mul_u32_u24 v20, 7168, v20")
    a("v_and_b32 v21, 15, v2")
    a("v_lshl_add_u32 v20, v21, 1, v20")
    a("v_lshlrev_b32 v21, 4, v2")
    a("v_add_u32 v22, 3584, v20")
    a("s_lshl_b32 s33, s14, 1")
    a("s_add_u32 s33, s33, s15")
    a("s_sub_u32 s33, s33, 2")
    for j in range(4):
        a(f"s_cmp_ge_u32 s33, 392")
        a("s_cbranch_scc1 K1_DONE")
        a("s_mul_i32 s34, s33, 2341")
        a("s_lshr_b32 s34, s34, 16")
        a("s_mul_i32 s35, s34, 28")
        a("s_sub_u32 s35, s33, s35")
        a("s_mul_i32 s36, s34, 28672")
        a("s_lshl_b32 s35, s35, 5")
        a("s_add_u32 s36, s36, s35")
        for i in range(8):
            a(f"buffer_load_ushort v{32+i}, v20, s[16:19], s36 offen offset:{896*i}" if 896*i < 4096 else
              f"buffer_load_ushort v{32+i}, v22, s[16:19], s36 offen offset:{896*i-3584}")
            if i == -1: pass
        a("s_waitcnt vmcnt(0)")
        for i in range(4):
            a(f"v_lshl_or_b32 v{40+i}, v{33+2*i}, 16, v{32+2*i}")
        a("s_lshl_b32 s36, s33, 10")
        a(f"s_add_u32 s36, s36, {WS_WOF}")
        a("buffer_store_dwordx4 v[40:43], v21, s[28:31], s36 offen")
        a("s_add_u32 s33, s33, 128")
    a.label("K1_DONE")
    a("s_endpgm")
    kernel_desc(a, name, 128)
    return name, (256, 1, 1), (512, 1, 1), LDS


def main():
    from gen_k2b import gen_k2
    from gen_gemm import gen_k3, gen_k4
    a = Asm()
    launches = []
    body = Asm()
    for g in (gen_k1, gen_k2, gen_k3, gen_k4):
        launches.append(g(body))
    out = HEADER
    for name, grid, block, lds in launches:
        out += f"; @launch kernel={name} grid=({grid[0]},{grid[1]},{grid[2]}) block=({block[0]},{block[1]},{block[2]}) lds={lds}\n"
    out += '.amdgcn_target "amdgcn-amd-amdhsa--gfx950"\n'
    out += body.text()
    open(sys.argv[1], "w").write(out)

if __name__ == '__main__':
    main()
```

```python
from gen import *
import os

WS_WOF = 9 << 20; WS_KN = 10 << 20

def gen_k2(a):
    name = "k2_attn_kernel"
    kernel_begin(a, name)
    LDS = 163840
    WOB = 65536
    MISC = 151552
    THR = float(os.environ.get("THR", "8.0"))
    import struct
    thr_bits = struct.unpack("<I", struct.pack("<f", THR))[0]
    a("s_cmp_ge_u32 s2, 256")
    a("s_cbranch_scc1 K2_DONE")
    a("s_load_dwordx2 s[4:5], s[0:1], 0")
    a("s_load_dwordx2 s[12:13], s[0:1], 96")
    a("s_load_dwordx2 s[6:7], s[0:1], 48")
    a("s_load_dwordx2 s[8:9], s[0:1], 64")
    a("v_lshrrev_b32 v1, 6, v0")
    a("v_and_b32 v2, 63, v0")
    a("s_nop 0")
    a("v_readfirstlane_b32 s32, v1")
    a("s_waitcnt lgkmcnt(0)")
    a("s_and_b32 s33, s32, 3")
    a("s_lshr_b32 s34, s32, 2")
    srd(a, 16, 4, 2048 * 896)
    srd(a, 28, 12, WS_SIZE)
    TS = os.environ.get("TS")
    tsn = [0]
    if TS:
        a("s_load_dwordx2 s[60:61], s[0:1], 88")
        a("s_waitcnt lgkmcnt(0)")
        srd(a, 64, 60, 256)
    def ts():
        if not TS: return
        i = tsn[0]; tsn[0] += 1
        a("s_memtime s[70:71]")
        a("s_waitcnt lgkmcnt(0)")
        a("v_mov_b32 v250, s70")
        a("s_cmp_eq_u32 s2, %s" % TS)
        a(f"s_cbranch_scc0 K2_TS{i}")
        a("s_cmp_eq_u32 s32, 0")
        a(f"s_cbranch_scc0 K2_TS{i}")
        a(f"v_mov_b32 v251, {4*i}")
        a("buffer_store_dword v250, v251, s[64:67], 0 offen")
        a.label(f"K2_TS{i}")
    ts()
    RT = os.environ.get("RT")
    def rt(i):
        if not RT: return
        a("s_memrealtime s[80:81]")
        a("s_waitcnt lgkmcnt(0)")
        a("v_mov_b32 v250, s80")
        a("v_mov_b32 v251, 0")
        a("s_lshl_b32 s82, s2, 6")
        a("s_lshl_b32 s83, s32, 3")
        a("s_add_u32 s82, s82, s83")
        a(f"s_add_u32 s82, s82, {(16<<20) + 4*i}")
        a("buffer_store_dword v250, v251, s[28:31], s82 offen")
    rt(0)
    Q = 16; S = [24, 40]; P = 56; O = 64; KB = [80, 88]; VB = 96; WR = 104
    TM = 216
    a("v_lshlrev_b32 v6, 4, v2")
    a("s_lshl_b32 s38, s34, 16")
    a("s_lshl_b32 s39, s33, 10")
    a("s_add_u32 s38, s38, s39")
    a("s_lshl_b32 s40, s34, 15")
    a("s_add_u32 s39, s39, s40")
    def kv_items(c):
        sl = (c & 3) * 8192
        its = []
        for (wsb, lo) in ((WS_K, 0), (WS_V, 4096)):
            its.append([f"s_add_u32 s40, s39, {sl+lo}", f"s_add_u32 s41, s38, {wsb+c*4096}", "s_mov_b32 m0, s40", "s_nop 0",
                        "buffer_load_dwordx4 v6, s[28:31], s41 offen lds"])
        return its
    def kvdma(c):
        for it in kv_items(c):
            for l in it: a(l)
    kvdma(0)
    kvdma(1)
    a("v_and_b32 v3, 7, v2")
    a("v_lshlrev_b32 v3, 10, v3")
    a("v_bfe_u32 v4, v2, 3, 2")
    a("v_lshl_add_u32 v3, v4, 6, v3")
    a("v_lshrrev_b32 v5, 5, v2")
    a("v_lshl_add_u32 v3, v5, 4, v3")
    a("s_lshl_b32 s35, s2, 13")
    a("s_lshl_b32 s36, s33, 8")
    a("s_add_u32 s35, s35, s36")
    a(f"buffer_load_dwordx4 v[{Q}:{Q+3}], v3, s[28:31], s35 offen")
    a(f"buffer_load_dwordx4 v[{Q+4}:{Q+7}], v3, s[28:31], s35 offen offset:32")
    a("v_lshlrev_b32 v8, 2, v2")
    a(f"s_mov_b32 s40, {WS_KN}")
    a(f"buffer_load_dword v{216+10}, v8, s[28:31], s40 offen")
    a("s_lshl_b32 s40, s34, 15")
    a("v_add_u32 v7, s40, v6")
    a("s_lshl_b32 s44, s32, 12")
    a(f"s_add_u32 s44, s44, {WS_WOF}")
    a("s_lshl_b32 s45, s32, 12")
    a(f"s_add_u32 s45, s45, {WOB}")
    srd(a, 20, 6, 2048 * 3584)
    srd(a, 24, 8, 1792 * 4096)
    a("s_and_b32 s50, s2, 7")
    a("s_lshr_b32 s51, s2, 3")
    a("v_lshrrev_b32 v8, 3, v2")
    a("v_and_b32 v9, 7, v2")
    a("s_movk_i32 s40, 3584")
    a("v_mul_lo_u32 v10, v8, s40")
    a("v_lshl_add_u32 v10, v9, 4, v10")
    a("v_lshlrev_b32 v11, 12, v8")
    a("v_lshl_add_u32 v11, v9, 4, v11")
    a("s_lshl_b32 s50, s50, 7")
    a("s_mul_i32 s52, s51, %d" % (64 * 3584))
    a("s_add_u32 s52, s52, s50")
    a("s_mul_i32 s53, s51, %d" % (56 * 4096))
    a("s_add_u32 s53, s53, s50")
    a("s_mov_b32 s42, 0")
    a("s_mov_b32 s43, -1")
    a("s_mov_b32 s46, 0xff800000")
    a(f"v_mov_b32 v{TM}, 0")
    def wreg(ks, mt):
        return (WR + (ks * 4 + mt) * 4) if ks < 7 else (240 + 4 * mt)
    def woreg(ks):
        its = []
        for mt in range(4):
            r = wreg(ks, mt)
            its.append([f"s_add_u32 s40, s44, {ks*28672+mt*1024}", f"buffer_load_dwordx4 v[{r}:{r+3}], v6, s[28:31], s40 offen"])
        return its
    def wolds(ks):
        its = []
        for mt in range(4):
            its.append([f"s_add_u32 s40, s45, {(ks-8)*28672+mt*1024}", f"s_add_u32 s41, s44, {ks*28672+mt*1024}", "s_mov_b32 m0, s40", "s_nop 0",
                        "buffer_load_dwordx4 v6, s[28:31], s41 offen lds"])
        return its
    def pf7_items(c):
        its = []
        for n, (m, j, r8) in enumerate(PF7[c]):
            if m == 0:
                its.append([f"s_add_u32 s40, s52, {j*1024 + r8*8*3584}", f"buffer_load_dwordx4 v[{104+4*n}:{107+4*n}], v10, s[20:23], s40 offen"])
            else:
                its.append([f"s_add_u32 s40, s53, {j*1024 + r8*8*4096}", f"buffer_load_dwordx4 v[{104+4*n}:{107+4*n}], v11, s[24:27], s40 offen"])
        return its
    uid = [0]
    queue = []
    def fill_queue(c):
        if c + 2 < 16:
            for it in kv_items(c + 2):
                queue.append((it, None, None))
        r, l = PF[c]
        its = []
        for ks in r: its += woreg(ks)
        for ks in l: its += wolds(ks)
        i7 = pf7_items(c)
        for i in range(max(len(its), len(i7))):
            queue.append((None, its[i] if i < len(its) else None, i7[i] if i < len(i7) else None))
    def slot(n=1):
        for _ in range(n):
            if not queue: return
            cm, a06, a7 = queue.pop(0)
            if cm:
                for l in cm: a(l)
            else:
                u = uid[0]; uid[0] += 1
                a("s_cmp_ge_u32 s32, 7")
                a(f"s_cbranch_scc1 K2_Q7_{u}")
                if a06:
                    for l in a06: a(l)
                a(f"s_branch K2_QJ_{u}")
                a.label(f"K2_Q7_{u}")
                if a7:
                    for l in a7: a(l)
                a.label(f"K2_QJ_{u}")
    def rdK(t):
        kb = KB[t & 1]; c = t >> 1; tl = t & 1
        off = (c & 3) * 8192 + tl * 2048
        a(f"ds_read_b128 v[{kb}:{kb+3}], v7 offset:{off}")
        a(f"ds_read_b128 v[{kb+4}:{kb+7}], v7 offset:{off+1024}")
    def rdV(t):
        c = t >> 1; tl = t & 1
        off = (c & 3) * 8192 + 4096 + tl * 2048
        a(f"ds_read_b128 v[{VB}:{VB+3}], v7 offset:{off}")
        a(f"ds_read_b128 v[{VB+4}:{VB+7}], v7 offset:{off+1024}")
    def mmS(t):
        kb = KB[t & 1]; s = S[t & 1]
        a(f"v_mfma_f32_32x32x16_bf16 v[{s}:{s+15}], v[{kb}:{kb+3}], v[{Q}:{Q+3}], 0")
        a(f"v_mfma_f32_32x32x16_bf16 v[{s}:{s+15}], v[{kb+4}:{kb+7}], v[{Q+4}:{Q+7}], v[{s}:{s+15}]")
    rare = []
    a("s_waitcnt vmcnt(0)")
    a("s_barrier")
    rdK(0)
    rdK(1)
    a("s_waitcnt lgkmcnt(2)")
    mmS(0)
    P2 = [P, 232]
    def boundary(md, c):
        if c > 0:
            if c + 1 < 16:
                a("s_cmp_ge_u32 s32, 7")
                a(f"s_cbranch_scc1 K2{md}_W7_{c}")
                a(f"s_waitcnt vmcnt({pf_count(c-1)})")
                a(f"s_branch K2{md}_WJ_{c}")
                a.label(f"K2{md}_W7_{c}")
                a(f"s_waitcnt vmcnt({len(PF7[c-1])})")
                a.label(f"K2{md}_WJ_{c}")
            if not os.environ.get("NOBAR"): a("s_barrier")
            if c in (4, 8): ts()
        assert not queue
        fill_queue(c)
    def tile_max_check(md, t, s):
        a(f"v_max3_f32 v{TM+1}, v{s}, v{s+1}, v{s+2}")
        a(f"v_max3_f32 v{TM+2}, v{s+3}, v{s+4}, v{s+5}")
        a(f"v_max3_f32 v{TM+1}, v{TM+1}, v{s+6}, v{s+7}")
        a(f"v_max3_f32 v{TM+2}, v{TM+2}, v{s+8}, v{s+9}")
        a(f"v_max3_f32 v{TM+1}, v{TM+1}, v{s+10}, v{s+11}")
        a(f"v_max3_f32 v{TM+2}, v{TM+2}, v{s+12}, v{s+13}")
        a(f"v_max3_f32 v{TM+1}, v{TM+1}, v{s+14}, v{s+15}")
        a(f"v_max_f32 v{TM+1}, v{TM+1}, v{TM+2}")
        a(f"v_cmp_lt_f32 vcc, s46, v{TM+1}")
        a(f"s_cbranch_vccnz K2{md}_RARE{t}")
        a.label(f"K2{md}_BACK{t}")
    def safe_loop():
        md = "S"
        for t in range(32):
            c = t >> 1; tl = t & 1
            if tl == 0:
                boundary(md, c)
                slot(2)
            rdV(t)
            has_next = t + 1 < 32
            if has_next:
                a("s_waitcnt lgkmcnt(2)")
                mmS(t + 1)
                if t + 2 < 32:
                    rdK(t + 2)
            else:
                a("s_nop 7")
            nk = 2 if t + 2 < 32 else 0
            s = S[t & 1]
            tile_max_check(md, t, s)
            rare.append((md, t, has_next))
            for i in range(16):
                a(f"v_exp_f32 v{s+i}, v{s+i}")
                if i in (3, 9, 15): slot(1)
            for i in range(8):
                a(f"v_cvt_pk_bf16_f32 v{P+i}, v{s+2*i}, v{s+2*i+1}")
            if tl == 1: slot(8)
            a(f"s_waitcnt lgkmcnt({nk})")
            cc = "0" if t == 0 else f"v[{O}:{O+15}]"
            a(f"v_mfma_f32_32x32x16_bf16 v[{O}:{O+15}], v[{VB}:{VB+3}], v[{P}:{P+3}], {cc}")
            a(f"v_mfma_f32_32x32x16_bf16 v[{O}:{O+15}], v[{VB+4}:{VB+7}], v[{P+4}:{P+7}], v[{O}:{O+15}]")
    def fast_loop():
        md = "F"
        for t in range(33):
            c = t >> 1; tl = t & 1
            real = t < 32
            if real and tl == 0:
                boundary(md, c)
                slot(2)
            if t > 0:
                rdV(t - 1)
            kb = KB[(t + 1) & 1]; sn = S[(t + 1) & 1]; s = S[t & 1]
            pp = P2[(t - 1) & 1]
            has_next = t + 1 < 32
            def ex(lo, hi):
                if not real: return
                for i in range(lo, hi):
                    if not os.environ.get("NOEXP"): a(f"v_exp_f32 v{s+i}, v{s+i}")
            if has_next:
                a(f"s_waitcnt lgkmcnt({2 if t > 0 else 0})")
                a(f"v_mfma_f32_32x32x16_bf16 v[{sn}:{sn+15}], v[{kb}:{kb+3}], v[{Q}:{Q+3}], 0")
            if t == 0:
                a("s_nop 15")
                tile_max_check(md, t, s)
                rare.append((md, t, False))
            ex(0, 4)
            if has_next:
                a(f"v_mfma_f32_32x32x16_bf16 v[{sn}:{sn+15}], v[{kb+4}:{kb+7}], v[{Q+4}:{Q+7}], v[{sn}:{sn+15}]")
            if real: slot(1)
            ex(4, 8)
            if t > 0:
                a("s_waitcnt lgkmcnt(0)")
                cc = "0" if t == 1 else f"v[{O}:{O+15}]"
                a(f"v_mfma_f32_32x32x16_bf16 v[{O}:{O+15}], v[{VB}:{VB+3}], v[{pp}:{pp+3}], {cc}")
            if real: slot(1)
            ex(8, 12)
            if t > 0:
                a(f"v_mfma_f32_32x32x16_bf16 v[{O}:{O+15}], v[{VB+4}:{VB+7}], v[{pp+4}:{pp+7}], v[{O}:{O+15}]")
            if t + 2 < 32:
                rdK(t + 2)
            if real: slot(1)
            ex(12, 16)
            if real:
                pc = P2[t & 1]
                for i in range(8):
                    if not os.environ.get("NOCVT"): a(f"v_cvt_pk_bf16_f32 v{pc+i}, v{s+2*i}, v{s+2*i+1}")
                if tl == 1: slot(8)
    def main_loop(md):
        if md == "F": fast_loop()
        else: safe_loop()
    a(f"v_mov_b32 v{TM+8}, 0")
    for r in range(8):
        a(f"v_lshlrev_b32 v{TM+1}, 16, v{Q+r}")
        a(f"v_and_b32 v{TM+2}, 0xffff0000, v{Q+r}")
        a(f"v_fmac_f32 v{TM+8}, v{TM+1}, v{TM+1}")
        a(f"v_fmac_f32 v{TM+8}, v{TM+2}, v{TM+2}")
    a(f"v_xor_b32 v{TM+2}, 32, v2")
    a(f"v_lshlrev_b32 v{TM+2}, 2, v{TM+2}")
    a(f"ds_bpermute_b32 v{TM+3}, v{TM+2}, v{TM+8}")
    a(f"v_mov_b32 v{TM+9}, v{TM+10}")
    for sh in (1, 2, 4, 8):
        a("s_nop 1")
        a(f"v_mov_b32 v{TM+4}, v{TM+9}")
        a("s_nop 1")
        a(f"v_mov_b32 v{TM+4}, v{TM+9} row_shr:{sh} row_mask:0xf bank_mask:0xf")
        a("s_nop 1")
        a(f"v_max_f32 v{TM+9}, v{TM+9}, v{TM+4}")
    a("s_nop 1")
    a(f"v_readlane_b32 s54, v{TM+9}, 15")
    a(f"v_readlane_b32 s55, v{TM+9}, 31")
    a(f"v_readlane_b32 s56, v{TM+9}, 47")
    a(f"v_readlane_b32 s57, v{TM+9}, 63")
    a("s_waitcnt lgkmcnt(0)")
    a(f"v_add_f32 v{TM+8}, v{TM+8}, v{TM+3}")
    a(f"v_mov_b32 v{TM+9}, s54")
    a(f"v_max_f32 v{TM+9}, s55, v{TM+9}")
    a(f"v_max_f32 v{TM+9}, s56, v{TM+9}")
    a(f"v_max_f32 v{TM+9}, s57, v{TM+9}")
    a(f"v_mul_f32 v{TM+8}, v{TM+8}, v{TM+9}")
    a(f"v_mov_b32 v{TM+9}, 0x45100000")
    a(f"v_cmp_nlt_f32 vcc, v{TM+8}, v{TM+9}")
    a("s_cbranch_vccnz K2_SAFE")
    main_loop("F")
    a("s_branch K2_LOOPEND")
    a.label("K2_SAFE")
    main_loop("S")
    a.label("K2_LOOPEND")
    ts()
    LATE = list(range(24, 64)) + list(range(80, 104))
    OP = 0; OPP = 144
    OA = 36864; OAP = 912
    HT = 0; HTP = 1808
    ST = 16384
    MXB = MISC
    a("s_cmp_ge_u32 s32, 7")
    a("s_cbranch_scc1 K2_NOLATE")
    for ks in range(11, 14):
        for mt in range(4):
            r = LATE[((ks - 11) * 4 + mt) * 4]
            a(f"s_add_u32 s40, s44, {ks*28672+mt*1024}")
            a(f"buffer_load_dwordx4 v[{r}:{r+3}], v6, s[28:31], s40 offen")
    a.label("K2_NOLATE")
    a("s_barrier")
    a("v_and_b32 v10, 15, v2")
    a("v_lshrrev_b32 v11, 4, v2")
    a("s_movk_i32 s40, 896")
    a("v_mul_lo_u32 v12, v10, s40")
    a("v_lshl_add_u32 v12, v11, 3, v12")
    a("s_mul_i32 s40, s2, 7168")
    a("s_lshl_b32 s41, s32, 7")
    a("s_add_u32 s40, s40, s41")
    a("v_cmp_gt_u32 vcc, 8, v10")
    a("v_mov_b32 v13, 0x7fffffff")
    a("s_nop 0")
    a("v_cndmask_b32 v12, v13, v12, vcc")
    for mt in range(4):
        a(f"buffer_load_dwordx2 v[{232+2*mt}:{233+2*mt}], v12, s[16:19], s40 offen offset:{32*mt}")
    a("v_lshlrev_b32 v14, 6, v2")
    a(f"s_lshl_b32 s40, s33, 12")
    a("v_add_u32 v14, s40, v14")
    a("s_lshl_b32 s40, s33, 8")
    a(f"s_add_u32 s40, s40, {MXB}")
    a("v_lshlrev_b32 v9, 2, v2")
    a("v_add_u32 v9, s40, v9")
    a("s_cmp_eq_u32 s34, 0")
    a("s_cbranch_scc1 K2_MRG0")
    for g4 in range(4):
        a(f"ds_write_b128 v14, v[{O+4*g4}:{O+4*g4+3}] offset:{OP+16*g4}")
    a(f"ds_write_b32 v9, v{TM}")
    a("s_waitcnt lgkmcnt(0)")
    a("s_barrier")
    a("s_branch K2_MRG1")
    a.label("K2_MRG0")
    a("s_barrier")
    for g4 in range(4):
        a(f"ds_read_b128 v[{216+4*g4 if False else 0}:{0}], v14") if False else None
    a(f"ds_read_b128 v[8:11], v14 offset:{OP}") if False else None
    for g4 in range(4):
        a(f"ds_read_b128 v[{88+4*g4}:{91+4*g4}], v14 offset:{OP+16*g4}")
    a(f"ds_read_b32 v217, v9")
    a("s_waitcnt lgkmcnt(0)")
    a(f"v_max_f32 v218, v{TM}, v217")
    a(f"v_sub_f32 v219, v{TM}, v218")
    a("v_sub_f32 v220, v217, v218")
    a("v_exp_f32 v219, v219")
    a("v_exp_f32 v220, v220")
    a("s_nop 0")
    for i in range(16):
        a(f"v_mul_f32 v{O+i}, v{O+i}, v219")
    for i in range(16):
        a(f"v_fmac_f32 v{O+i}, v{88+i}, v220")
    a("v_or_b32 v221, 32, v2")
    a("v_lshlrev_b32 v221, 2, v221")
    a(f"ds_bpermute_b32 v222, v221, v{O+12}")
    a("s_waitcnt lgkmcnt(0)")
    a("v_rcp_f32 v222, v222")
    a("s_nop 0")
    for i in range(16):
        a(f"v_mul_f32 v{O+i}, v{O+i}, v222")
    for i in range(8):
        a(f"v_cvt_pk_bf16_f32 v{88+i}, v{O+2*i}, v{O+2*i+1}")
    a("v_and_b32 v8, 7, v2")
    a(f"v_mul_u32_u24 v8, {OAP}, v8")
    a("v_bfe_u32 v9, v2, 3, 2")
    a("s_lshl_b32 s40, s33, 2")
    a("v_add_u32 v9, s40, v9")
    a("v_mul_u32_u24 v9, 56, v9")
    a("v_add_u32 v8, v8, v9")
    a("v_lshl_add_u32 v8, v5, 3, v8")
    for g4 in range(3):
        a(f"ds_write_b64 v8, v[{88+2*g4}:{89+2*g4}] offset:{OA+16*g4}")
    a("v_cmp_gt_u32 vcc, 32, v2")
    a("s_and_saveexec_b64 s[46:47], vcc")
    a(f"ds_write_b64 v8, v[94:95] offset:{OA+48}")
    a("s_mov_b64 exec, s[46:47]")
    a.label("K2_MRG1")
    a("s_waitcnt vmcnt(0) lgkmcnt(0)")
    a("s_barrier")
    ts()
    a("s_cmp_ge_u32 s32, 7")
    a("s_cbranch_scc1 K2_HS")
    a(f"v_mul_u32_u24 v8, {OAP}, v10")
    a("v_lshl_add_u32 v8, v11, 4, v8")
    a("v_add_u32 v9, s45, v6")
    ACC = 64
    BF = [216, 220]
    AFB = {8: 88, 9: 224, 10: 88}
    AFB = {8: 88, 9: 200, 10: 88}
    bcnt = [0]
    def rdB(ks):
        b = BF[bcnt[0] & 1]; bcnt[0] += 1
        a(f"ds_read_b128 v[{b}:{b+3}], v8 offset:{OA+ks*64}")
    def rdA(ks, base):
        for mt in range(4):
            a(f"ds_read_b128 v[{base+4*mt}:{base+4*mt+3}], v9 offset:{(ks-8)*28672+mt*1024}")
    order = list(range(0, 8)) + [11, 12, 13] + [8, 9, 10]
    rdB(order[0])
    rdA(8, 88)
    for n, ks in enumerate(order):
        if n + 1 < 14:
            rdB(order[n + 1])
        if ks == 1: rdA(9, 104)
        if ks == 2: rdA(10, 120)
        a("s_waitcnt lgkmcnt(%d)" % (1 if n + 1 < 14 and ks not in (1, 2) else (5 if ks in (1, 2) else 0)))
        b = BF[n & 1]
        for mt in range(4):
            c = "0" if n == 0 else f"v[{ACC+4*mt}:{ACC+4*mt+3}]"
            if ks < 8:
                r = wreg(ks, mt)
            elif ks < 11:
                r = {8: 88, 9: 104, 10: 120}[ks] + 4 * mt
            else:
                r = LATE[((ks - 11) * 4 + mt) * 4]
            a(f"v_mfma_f32_16x16x32_bf16 v[{ACC+4*mt}:{ACC+4*mt+3}], v[{r}:{r+3}], v[{b}:{b+3}], {c}")
    a("s_nop 15")
    ts()
    for mt in range(4):
        b = ACC + 4 * mt
        a(f"v_cvt_pk_bf16_f32 v24, v{b}, v{b+1}")
        a(f"v_cvt_pk_bf16_f32 v25, v{b+2}, v{b+3}")
        a(f"v_lshlrev_b32 v26, 16, v24")
        a(f"v_and_b32 v27, 0xffff0000, v24")
        a(f"v_lshlrev_b32 v28, 16, v25")
        a(f"v_and_b32 v29, 0xffff0000, v25")
        xr = 232 + 2 * mt
        a(f"v_lshlrev_b32 v30, 16, v{xr}")
        a(f"v_and_b32 v31, 0xffff0000, v{xr}")
        a(f"v_lshlrev_b32 v32, 16, v{xr+1}")
        a(f"v_and_b32 v33, 0xffff0000, v{xr+1}")
        for i in range(4):
            a(f"v_add_f32 v{26+i}, v{26+i}, v{30+i}")
        a(f"v_cvt_pk_bf16_f32 v24, v26, v27")
        a(f"v_cvt_pk_bf16_f32 v25, v28, v29")
        a(f"v_lshlrev_b32 v{b}, 16, v24")
        a(f"v_and_b32 v{b+1}, 0xffff0000, v24")
        a(f"v_lshlrev_b32 v{b+2}, 16, v25")
        a(f"v_and_b32 v{b+3}, 0xffff0000, v25")
    a(f"v_mul_u32_u24 v24, {HTP}, v10")
    a("v_lshl_add_u32 v24, v11, 4, v24")
    a("s_lshl_b32 s40, s32, 8")
    a("v_add_u32 v24, s40, v24")
    a("v_cmp_gt_u32 vcc, 8, v10")
    a("s_and_saveexec_b64 s[46:47], vcc")
    for mt in range(4):
        a(f"ds_write_b128 v24, v[{ACC+4*mt}:{ACC+4*mt+3}] offset:{HT+64*mt}")
    a("s_mov_b64 exec, s[46:47]")
    a.label("K2_HS")
    a("s_waitcnt lgkmcnt(0)")
    a("s_barrier")
    a("v_lshlrev_b32 v24, 5, v2")
    a(f"s_mul_i32 s40, s32, {HTP}")
    a("v_add_u32 v24, s40, v24")
    for i in range(8):
        a(f"v_mov_b32 v{32+i}, 0")
    a("v_cmp_gt_u32 vcc, 56, v2")
    a("s_and_saveexec_b64 s[46:47], vcc")
    a(f"ds_read_b128 v[32:35], v24 offset:{HT}")
    a(f"ds_read_b128 v[36:39], v24 offset:{HT+16}")
    a("s_waitcnt lgkmcnt(0)")
    a("s_mov_b64 exec, s[46:47]")
    a("v_add_f32 v40, v32, v33")
    for i in range(2, 8):
        a(f"v_add_f32 v40, v40, v{32+i}")
    def wave_sum(v, s):
        for ctl in ("row_shr:1", "row_shr:2", "row_shr:4", "row_shr:8"):
            a("s_nop 1")
            a(f"v_add_f32 v{v}, v{v}, v{v} {ctl} row_mask:0xf bank_mask:0xf bound_ctrl:0")
        a("s_nop 1")
        a(f"v_add_f32 v{v}, v{v}, v{v} row_bcast:15 row_mask:0xa bank_mask:0xf")
        a("s_nop 1")
        a(f"v_add_f32 v{v}, v{v}, v{v} row_bcast:31 row_mask:0xc bank_mask:0xf")
        a("s_nop 1")
        a(f"v_readlane_b32 s{s}, v{v}, 63")
        a("s_nop 3")
        a(f"v_mov_b32 v41, s{s}")
    wave_sum(40, 48)
    a("v_mul_f32 v42, 0x3b124925, v41")
    a("v_mov_b32 v40, 0")
    a("s_and_saveexec_b64 s[46:47], vcc")
    for i in range(8):
        a(f"v_sub_f32 v{44+i}, v{32+i}, v42")
    a("v_mul_f32 v40, v44, v44")
    for i in range(1, 8):
        a(f"v_fmac_f32 v40, v{44+i}, v{44+i}")
    for i in range(4):
        a(f"v_cvt_pk_bf16_f32 v{52+i}, v{32+2*i}, v{33+2*i}")
    a("v_lshlrev_b32 v25, 4, v2")
    a("s_lshl_b32 s40, s2, 3")
    a("s_add_u32 s40, s40, s32")
    a("s_mul_i32 s40, s40, 896")
    a(f"s_add_u32 s40, s40, {WS_H}")
    a("buffer_store_dwordx4 v[52:55], v25, s[28:31], s40 offen")
    a("s_mov_b64 exec, s[46:47]")
    wave_sum(40, 48)
    a("v_mov_b32 v43, 0x3727c5ac")
    a("v_fmac_f32 v43, 0x3b124925, v41")
    a("v_rsq_f32 v43, v43")
    a("s_lshl_b32 s40, s32, 3")
    a(f"s_add_u32 s40, s40, {ST}")
    a("v_mov_b32 v25, s40")
    a("v_cmp_eq_u32 vcc, 0, v2")
    a("s_and_saveexec_b64 s[46:47], vcc")
    a("ds_write_b64 v25, v[42:43]")
    a("s_mov_b64 exec, s[46:47]")
    a("s_waitcnt lgkmcnt(0)")
    a("s_barrier")
    a("v_cmp_gt_u32 vcc, 448, v0")
    a("s_and_saveexec_b64 s[46:47], vcc")
    a("s_cbranch_execz K2_DONE")
    a("v_lshlrev_b32 v24, 2, v0")
    for t in range(8):
        a(f"ds_read_b32 v{32+t}, v24 offset:{HT+t*HTP}")
    a(f"v_mov_b32 v25, {ST}")
    for t in range(4):
        a(f"ds_read_b128 v[{48+4*t}:{51+4*t}], v25 offset:{16*t}")
    a("v_lshrrev_b32 v26, 6, v0")
    a("v_and_b32 v27, 63, v0")
    a("v_lshlrev_b32 v26, 18, v26")
    a("v_lshl_add_u32 v26, v27, 7, v26")
    a("v_bfe_u32 v27, v27, 1, 3")
    a("s_and_b32 s40, s2, 7")
    a("v_xor_b32 v27, s40, v27")
    a("v_lshl_add_u32 v26, v27, 4, v26")
    a("s_lshr_b32 s40, s2, 3")
    a("s_lshl_b32 s40, s40, 13")
    a(f"s_add_u32 s40, s40, {WS_HNT}")
    a("s_waitcnt lgkmcnt(0)")
    for t in range(8):
        a(f"v_sub_f32 v{32+t}, v{32+t}, v{48+2*t}")
        a(f"v_mul_f32 v{32+t}, v{32+t}, v{49+2*t}")
    for i in range(4):
        a(f"v_cvt_pk_bf16_f32 v{40+i}, v{32+2*i}, v{33+2*i}")
    a("buffer_store_dwordx4 v[40:43], v26, s[28:31], s40 offen")
    ts()
    rt(1)
    a.label("K2_DONE")
    a("s_endpgm")
    for md, t, has_next in rare:
        s = S[t & 1]; sn = S[(t + 1) & 1]
        a.label(f"K2{md}_RARE{t}")
        a(f"v_xor_b32 v{TM+2}, 32, v2")
        a(f"v_lshlrev_b32 v{TM+2}, 2, v{TM+2}")
        a(f"ds_bpermute_b32 v{TM+3}, v{TM+2}, v{TM+1}")
        a("s_waitcnt lgkmcnt(0)")
        a(f"v_max_f32 v{TM+1}, v{TM+1}, v{TM+3}")
        a(f"v_cmp_lt_f32 vcc, s46, v{TM+1}")
        a("s_nop 1")
        a(f"v_cndmask_b32 v{TM+1}, 0, v{TM+1}, vcc")
        a(f"v_add_f32 v{TM+1}, v{TM}, v{TM+1}")
        a(f"v_sub_f32 v{TM+2}, 0, v{TM+1}")
        a(f"v_cvt_pk_bf16_f32 v{TM+3}, v{TM+2}, v{TM+2}")
        a(f"v_lshlrev_b32 v{TM+4}, 16, v{TM+3}")
        a(f"v_sub_f32 v{TM+5}, v{TM+2}, v{TM+4}")
        a(f"v_cvt_pk_bf16_f32 v{TM+5}, v{TM+5}, v{TM+5}")
        a(f"v_lshlrev_b32 v{TM+6}, 16, v{TM+5}")
        a(f"v_add_f32 v{TM+4}, v{TM+4}, v{TM+6}")
        a(f"v_and_b32 v{TM+3}, 0xffff, v{TM+3}")
        a(f"v_lshl_or_b32 v{TM+3}, v{TM+5}, 16, v{TM+3}")
        a(f"v_cndmask_b32 v{Q+6}, v{Q+6}, v{TM+3}, s[42:43]")
        a(f"v_add_f32 v{TM+5}, v{TM}, v{TM+4}")
        a(f"v_sub_f32 v{TM}, 0, v{TM+4}")
        for i in range(16):
            a(f"v_add_f32 v{s+i}, v{s+i}, v{TM+5}")
        if has_next:
            a("s_nop 7")
            for i in range(16):
                a(f"v_add_f32 v{sn+i}, v{sn+i}, v{TM+5}")
        if t > 0:
            a(f"v_exp_f32 v{TM+5}, v{TM+5}")
            a("s_nop 7")
            a("s_nop 7")
            for i in range(16):
                a(f"v_mul_f32 v{O+i}, v{O+i}, v{TM+5}")
        a(f"s_mov_b32 s46, 0x{thr_bits:08x}")
        a("s_nop 1")
        a(f"s_branch K2{md}_BACK{t}")
    kernel_desc(a, name, 256)
    return name, (256, 1, 1), (512, 1, 1), LDS

PF = {c: ([], []) for c in range(16)}
for _i, _c in enumerate((0, 2, 4, 6, 8, 10, 12, 13)): PF[_c] = ([_i], [])
for _i, _c in enumerate((1, 3, 5)): PF[_c] = ([], [8 + _i])
if os.environ.get('NOPF'): PF = {c: ([], []) for c in range(16)}
def pf_count(c):
    r, l = PF[c]
    return 4 * (len(r) + len(l))
_all = [(0, j, r8) for j in range(4) for r8 in range(8)] + [(1, j, r8) for j in range(4) for r8 in range(7)]
PF7 = {c: _all[c*5:(c+1)*5] for c in range(16)}
if os.environ.get('NOPF7'): PF7 = {c: [] for c in range(16)}
```
